```python
import torch

def _softmax(x, axis=-1):
    return torch.softmax(x, dim=axis)
def _gelu(x):
    return torch.nn.functional.gelu(x, approximate="tanh")
def _silu(x):
    return torch.nn.functional.silu(x)
def _sigmoid(x):
    return torch.sigmoid(x)
def _layernorm(x, axis=-1, eps=1e-5):
    m = x.mean(dim=axis, keepdim=True)
    v = x.var(dim=axis, keepdim=True, unbiased=False)
    return (x - m) / torch.sqrt(v + eps)
def _scatter_add(tgt, idx, src, axis=0):
    return tgt.clone().index_add_(axis, idx, src)
def _segment_sum(src, seg, n):
    out = torch.zeros((n,) + src.shape[1:], dtype=src.dtype)
    return out.index_add_(0, seg, src)
def _pad(x, pw):
    flat = tuple(v for pair in reversed(pw) for v in pair)
    return torch.nn.functional.pad(x, flat)

kernel_name = 'parallel_sum__mha_block__geglu_ffn__prompt'

def setup_inputs():

    _w = (lambda a: (lambda t: t.to(torch.bfloat16) if t.is_floating_point() else t)(torch.as_tensor(a)))
    def _A_setup():
        B, S, D, H = 1, 2048, 448, 16
        return {
            "x": _w((lambda *s: torch.randn(*s, dtype=torch.bfloat16) * 0.05)(B, S, D)),
            "wqkv": _w((lambda *s: torch.randn(*s, dtype=torch.bfloat16) * 0.2)(D, 3 * D)),
            "wo": _w((lambda *s: torch.randn(*s, dtype=torch.bfloat16) * 0.1)(D, D)),
        }
    _A_in = _A_setup()

    def _B_setup():
        B, S, D, F = 1, 2048, 448, 1792
        return {
            "x": _w((lambda *s: torch.randn(*s, dtype=torch.bfloat16) * 0.05)(B, S, D)),
            "w_gate": _w((lambda *s: torch.randn(*s, dtype=torch.bfloat16) * 0.1)(D, F)),
            "w_up": _w((lambda *s: torch.randn(*s, dtype=torch.bfloat16) * 0.1)(D, F)),
            "w_down": _w((lambda *s: torch.randn(*s, dtype=torch.bfloat16) * 0.1)(F, D)),
        }
    _B_in = _B_setup()

    return {
        "A_x": _A_in["x"],
        "A_wqkv": _A_in["wqkv"],
        "A_wo": _A_in["wo"],
        "B_x": _B_in["x"],
        "B_w_gate": _B_in["w_gate"],
        "B_w_up": _B_in["w_up"],
        "B_w_down": _B_in["w_down"],
    }

def reference(A_x, A_wqkv, A_wo, B_x, B_w_gate, B_w_up, B_w_down):
    def _A_ref(x, wqkv, wo):
        B, S, D = x.shape
        H = 16
        Dh = D // H
        qkv = (lambda x, *d: x.permute(*d))((x @ wqkv).reshape(B, S, 3, H, Dh), 2, 0, 3, 1, 4)
        q, k, v = qkv[0], qkv[1], qkv[2]
        scores = torch.einsum("bhqd,bhkd->bhqk", q, k) * (Dh ** -0.5)
        p = _softmax(scores, axis=-1)
        o = torch.einsum("bhqk,bhkd->bhqd", p, v)
        return (lambda x, *d: x.permute(*d))(o, 0, 2, 1, 3).reshape(B, S, D) @ wo

    def _B_ref(x, w_gate, w_up, w_down):
        return (_gelu(x @ w_gate) * (x @ w_up)) @ w_down

    x = A_x
    xn = _layernorm(x, axis=-1)
    return x + _A_ref(xn, A_wqkv, A_wo) + _B_ref(xn, B_w_gate, B_w_up, B_w_down)
```

```python
import re

TRANS = ("v_exp_f32", "v_log_f32", "v_rcp_f32", "v_rsq_f32", "v_sqrt_f32", "v_sin_f32", "v_cos_f32")


def vr(a, n=1):
    return f"v{a}" if n == 1 else f"v[{a}:{a + n - 1}]"


def sr(a, n=1):
    return f"s{a}" if n == 1 else f"s[{a}:{a + n - 1}]"


_REG = re.compile(r"\b([vs])(?:(\d+)|\[(\d+):(\d+)\])")


def regs_of(op):
    out = []
    for m in _REG.finditer(op):
        k = m.group(1)
        if m.group(2) is not None:
            out.append((k, int(m.group(2))))
        else:
            out += [(k, i) for i in range(int(m.group(3)), int(m.group(4)) + 1)]
    for name in ("vcc", "exec", "m0"):
        if re.search(r"\b" + name + r"\b", op):
            out.append(("x", name))
    return out


class Emit:
    def __init__(self):
        self.lines = []
        self.pos = 0
        self.lgkm = []
        self.vm = []
        self.last = {}
        self.cread = {}
        self.stdata = {}
        self.nops = 0
        self.stats = {}

    def raw(self, s):
        self.lines.append(s)

    def comment(self, s):
        self.lines.append("    ; " + s)

    def label(self, name):
        self.lines.append(name + ":")

    def _put(self, text, states=1):
        self.lines.append("    " + text)
        self.pos += states
        k = text.split()[0]
        self.stats[k] = self.stats.get(k, 0) + 1

    def nop(self, n):
        while n > 0:
            k = min(n, 16)
            self._put(f"s_nop {k - 1}", k)
            self.nops += 1
            n -= k

    def _need(self, prod_pos, states):
        have = self.pos - prod_pos - 1
        if have < states:
            self.nop(states - have)

    def wait(self, vm=None, lgkm=None):
        parts = []
        if vm is not None and vm < len(self.vm):
            assert vm <= 63
            parts.append(f"vmcnt({vm})")
            self.vm = self.vm[len(self.vm) - vm:] if vm else []
        if lgkm is not None and lgkm < len(self.lgkm):
            lgkm = min(lgkm, 15)
            parts.append(f"lgkmcnt({lgkm})")
            self.lgkm = self.lgkm[len(self.lgkm) - lgkm:] if lgkm else []
        if parts:
            self._put("s_waitcnt " + " ".join(parts))

    def wait_force(self, text):
        self._put("s_waitcnt " + text)
        if "vmcnt(0)" in text:
            self.vm = []
        if "lgkmcnt(0)" in text:
            self.lgkm = []

    def wait_regs(self, regs):
        regs = set(regs)
        nv = nl = None
        for i, d in enumerate(self.vm):
            if d and d[0] & regs:
                nv = len(self.vm) - 1 - i
        for i, d in enumerate(self.lgkm):
            if d & regs:
                nl = len(self.lgkm) - 1 - i
        if nv is not None and nv > 63:
            nv = 63
        self.wait(nv, nl)

    def wait_v(self, a, n=1):
        self.wait_regs([("v", i) for i in range(a, a + n)])

    def wait_tag(self, tag):
        nv = None
        for i, d in enumerate(self.vm):
            if d[1] is not None and d[1] <= tag:
                nv = len(self.vm) - 1 - i
        self.wait(nv, None)

    def _haz(self, kind, op, rd, wr, srcc=None, dst=None):
        for r in rd + wr:
            l = self.last.get(r)
            if l is None:
                continue
            lk, lp, ex = l
            isread = r in rd
            if lk == "mfma":
                passes, dreg = ex
                big = {4: 8, 8: 12}[passes]
                if kind == "mfma":
                    if srcc is not None and r in srcc[0]:
                        if srcc[0] == dreg and srcc[1] == passes:
                            pass
                        else:
                            self._need(lp, big - 2)
                        if r in srcc[2]:
                            self._need(lp, big)
                    elif isread:
                        self._need(lp, big)
                    else:
                        self._need(lp, big - 2)
                else:
                    self._need(lp, big)
            elif lk in ("valu", "trans", "dot"):
                if r[0] == "v":
                    if kind == "mfma" and isread:
                        self._need(lp, 2)
                    if lk == "trans" and kind in ("valu", "dot", "mfma", "perm", "dpp") and isread:
                        self._need(lp, 1)
                    if kind in ("perm", "dpp") and isread:
                        self._need(lp, 2)
                    if kind == "rdlane" and isread:
                        self._need(lp, 1)
                    if lk == "dot":
                        if not (kind == "dot" and ex == op and srcc is not None and r in srcc):
                            self._need(lp, 3)
                else:
                    if kind in ("valu", "trans", "dot", "perm", "dpp", "mfma") and isread:
                        self._need(lp, 2)
                    if kind == "rdlane" and isread:
                        self._need(lp, 4)
                    if kind in ("vmem", "ds") and isread:
                        self._need(lp, 5)
                    if kind == "salu" and isread:
                        self._need(lp, 1)
            elif lk == "salu":
                if r == ("x", "m0") and kind in ("vmem", "ds"):
                    self._need(lp, 1)
        if kind in ("valu", "trans", "dot", "perm", "dpp", "rdlane"):
            for r in wr:
                if r in self.cread:
                    self._need(self.cread[r], 7)
                if r in self.stdata:
                    self._need(self.stdata[r], 2)
        elif kind in ("vmem", "ds", "mfma"):
            for r in wr:
                if r in self.stdata:
                    self._need(self.stdata[r], 1)

    def _wrote(self, kind, wr, ex=None):
        for r in wr:
            self.last[r] = (kind, self.pos - 1, ex)

    def valu(self, op, *ops, mods="", rmw=False, ndst=1):
        wr = sum((regs_of(o) for o in ops[:ndst]), [])
        rd = sum((regs_of(o) for o in ops[ndst:]), [])
        base = op.replace("_e32", "").replace("_e64", "").replace("_dpp", "")
        if rmw or base in ("v_fmac_f32", "v_dot2c_f32_bf16"):
            rd = rd + wr
        kind = "valu"
        if base in TRANS:
            kind = "trans"
        if base.startswith("v_dot2"):
            kind = "dot"
        hk = kind
        if "quad_perm" in mods or "row_" in mods:
            hk = "dpp"
        if base.startswith("v_permlane"):
            hk = "perm"
            rd = rd + wr
            wr = list(rd)
        if base in ("v_readfirstlane_b32", "v_readlane_b32"):
            hk = "rdlane"
        if base.startswith("v_cndmask") and len(ops) == 3:
            rd = rd + [("x", "vcc")]
        self.wait_regs(rd + wr)
        srcc = None
        if kind == "dot":
            srcc = regs_of(ops[3]) if len(ops) > 3 else wr
        self._haz(hk, base, rd, wr, srcc=srcc)
        self._put(f"{op} " + ", ".join(ops) + (" " + mods if mods else ""))
        self._wrote(kind, wr, base if kind == "dot" else None)

    def salu(self, op, *ops, ndst=1):
        if op.startswith("s_cmp") or op.startswith("s_setprio") or op.startswith("s_cbranch") or op in ("s_branch", "s_barrier", "s_endpgm", "s_sleep"):
            ndst = 0
        wr = sum((regs_of(str(o)) for o in ops[:ndst]), [])
        rd = sum((regs_of(str(o)) for o in ops[ndst:]), [])
        self._haz("salu", op, rd, wr)
        self._put(f"{op} " + ", ".join(str(o) for o in ops) if ops else op)
        self._wrote("salu", wr)

    def mfma(self, d, a, b, c=None, shape="32x32x16"):
        n, passes = (16, 8) if shape == "32x32x16" else (4, 4)
        D = [("v", i) for i in range(d, d + n)]
        A = [("v", i) for i in range(a, a + 4)]
        B = [("v", i) for i in range(b, b + 4)]
        if c is None:
            c = d
        if c == "0":
            C = []
            cs = "0"
        else:
            C = [("v", i) for i in range(c, c + n)]
            cs = vr(c, n)
        self.wait_regs(A + B + C + D)
        self._haz("mfma", "mfma", A + B + C, D, srcc=(C, passes, A + B))
        self._put(f"v_mfma_f32_{shape}_bf16 {vr(d, n)}, {vr(a, 4)}, {vr(b, 4)}, {cs}")
        self._wrote("mfma", D, (passes, D))
        if C and C != D:
            for r in C:
                self.cread[r] = self.pos - 1

    def ds_read(self, op, d, n, addr, off=0):
        assert 0 <= off < 65536, off
        D = [("v", i) for i in range(d, d + n)]
        rd = [("v", addr)]
        self.wait_regs(rd + D)
        self._haz("ds", op, rd, D)
        self._put(f"{op} {vr(d, n)}, v{addr}" + (f" offset:{off}" if off else ""))
        self.lgkm.append(set(D))
        for r in D:
            self.last.pop(r, None)

    def ds_write(self, op, addr, s, n, off=0):
        assert 0 <= off < 65536, off
        rd = [("v", addr)] + [("v", i) for i in range(s, s + n)]
        self.wait_regs(rd)
        self._haz("ds", op, rd, [])
        self._put(f"{op} v{addr}, {vr(s, n)}" + (f" offset:{off}" if off else ""))
        self.lgkm.append(set())

    def bload(self, d, n, voff, srd, soff="0", off=0, tag=None, flags=""):
        assert 0 <= off < 4096
        op = {1: "buffer_load_dword", 2: "buffer_load_dwordx2", 4: "buffer_load_dwordx4"}[n]
        D = [("v", i) for i in range(d, d + n)]
        rd = [("v", voff)] + regs_of(sr(srd, 4)) + regs_of(str(soff))
        self.wait_regs(rd + D)
        self._haz("vmem", op, rd, D)
        self._put(f"{op} {vr(d, n)}, v{voff}, {sr(srd, 4)}, {soff} offen" + (f" offset:{off}" if off else "") + (" " + flags if flags else ""))
        self.vm.append((set(D), tag))
        for r in D:
            self.last.pop(r, None)

    def dma(self, voff, srd, soff="0", off=0, tag=None, flags=""):
        assert 0 <= off < 4096
        rd = [("v", voff), ("x", "m0")] + regs_of(sr(srd, 4)) + regs_of(str(soff))
        self.wait_regs(rd)
        self._haz("vmem", "dma", rd, [])
        self._put(f"buffer_load_dwordx4 v{voff}, {sr(srd, 4)}, {soff} offen" + (f" offset:{off}" if off else "") + (" " + flags if flags else "") + " lds")
        self.vm.append((set(), tag))

    def bstore(self, s, n, voff, srd, soff="0", off=0, flags=""):
        assert 0 <= off < 4096
        op = {1: "buffer_store_dword", 2: "buffer_store_dwordx2", 4: "buffer_store_dwordx4"}[n]
        S = [("v", i) for i in range(s, s + n)]
        rd = [("v", voff)] + S + regs_of(sr(srd, 4)) + regs_of(str(soff))
        self.wait_regs(rd)
        self._haz("vmem", op, rd, [])
        self._put(f"{op} {vr(s, n)}, v{voff}, {sr(srd, 4)}, {soff} offen" + (f" offset:{off}" if off else "") + (" " + flags if flags else ""))
        self.vm.append((set(), None))
        if n >= 3:
            for r in S:
                self.stdata[r] = self.pos - 1

    def barrier(self):
        self._put("s_barrier")

    def settle(self, n=16):
        self.nop(n)

    def fork(self):
        import copy
        e = Emit()
        e.pos = self.pos
        e.lgkm = copy.deepcopy(self.lgkm)
        e.vm = copy.deepcopy(self.vm)
        e.last = dict(self.last)
        e.cread = dict(self.cread)
        e.stdata = dict(self.stdata)
        return e

    def text(self):
        return "\n".join(self.lines) + "\n"
```

```python
import struct
from emit import *

WS_Q = 0x000000
WS_KV = 0x200000
WS_H = 0x600000
WS_O = 0xD00000
WS_P = 0xF00000
WS_SIZE = 0x1600000


def f2u(x):
    return struct.unpack("<I", struct.pack("<f", x))[0]


def hexf(x):
    return "0x%08x" % f2u(x)


def srd(e, d, base, nbytes):
    e.salu("s_mov_b32", sr(d), sr(base))
    e.salu("s_mov_b32", sr(d + 1), sr(base + 1))
    e.salu("s_mov_b32", sr(d + 2), hex(nbytes))
    e.salu("s_mov_b32", sr(d + 3), "0x20000")


XF = 16
ACC = 128
ACCQ = 192
WF = 208
TMP = 240
RINV_LDS = 19 * 8192


def unit_slot(u):
    if u < 5:
        return 14 + u
    if u < 20:
        return (19 + (u - 5)) % 20
    return unit_slot(u - 20)


def gen_k1(name):
    e = Emit()
    e.raw(f".p2align 8\n.globl {name}\n.type {name},@function\n{name}:")
    e.salu("s_cmp_ge_u32", "s2", 256)
    e.salu("s_cbranch_scc1", "K1_END")
    e.raw("    s_load_dwordx4 s[4:7], s[0:1], 0")
    e.raw("    s_load_dwordx4 s[8:11], s[0:1], 32")
    e.raw("    s_load_dwordx2 s[12:13], s[0:1], 72")
    e.salu("s_and_b32", "s3", "s2", 1)
    e.salu("s_lshl_b32", "s3", "s3", 3)
    e.salu("s_bfe_u32", "s32", "s2", hex((3 << 16) | 3))
    e.salu("s_add_u32", "s32", "s32", "s3")
    e.salu("s_bfe_u32", "s33", "s2", hex((2 << 16) | 1))
    e.salu("s_lshl_b32", "s33", "s33", 2)
    e.salu("s_lshr_b32", "s3", "s2", 6)
    e.salu("s_add_u32", "s33", "s33", "s3")
    e.valu("v_lshrrev_b32", "v1", "6", "v0")
    e.valu("v_and_b32", "v0", "63", "v0")
    e.valu("v_readfirstlane_b32", "s34", "v1")
    e.valu("v_lshrrev_b32", "v4", "3", "v0")
    e.valu("v_and_b32", "v5", "7", "v0")
    e.valu("v_mul_u32_u24", "v2", "896", "v4")
    e.valu("v_lshl_add_u32", "v2", "v5", "4", "v2")
    e.salu("s_lshr_b32", "s35", "s34", 2)
    e.salu("s_and_b32", "s36", "s34", 3)
    e.salu("s_lshl_b32", "s3", "s32", 3)
    e.salu("s_add_u32", "s3", "s3", "s34")
    e.salu("s_mul_i32", "s41", "s3", 16 * 896)
    e.salu("s_add_u32", "s42", "s41", 8 * 896)
    e.raw("    s_waitcnt lgkmcnt(0)")
    e.pos += 4
    srd(e, 16, 4, 1835008)
    XR = XF
    for rg in range(2):
        for c in range(7):
            e.bload(XR + 28 * rg + 4 * c, 4, 2, 16, "s41" if rg == 0 else "s42", 128 * c)
    srd(e, 20, 6, 1204224)
    srd(e, 28, 12, WS_SIZE)
    e.salu("s_lshr_b32", "s43", "s34", 1)
    e.salu("s_and_b32", "s44", "s34", 1)
    e.salu("s_bitcmp1_b32", "s34", 1, ndst=0)
    e.salu("s_cselect_b32", "s24", "s10", "s8")
    e.salu("s_cselect_b32", "s25", "s11", "s9")
    e.salu("s_mov_b32", "s27", "0x20000")
    e.salu("s_cmp_ge_u32", "s33", 14)
    e.salu("s_cselect_b32", "s24", "s6", "s24")
    e.salu("s_cselect_b32", "s25", "s7", "s25")
    e.salu("s_mov_b32", "s26", hex(1605632))
    e.salu("s_cselect_b32", "s26", hex(1204224), "s26")
    e.salu("s_movk_i32", "s45", 3584)
    e.salu("s_cselect_b32", "s45", 2688, "s45")
    e.salu("s_lshl_b32", "s46", "s33", 8)
    e.salu("s_lshl_b32", "s47", "s35", 7)
    e.salu("s_add_u32", "s46", "s46", "s47")
    e.salu("s_mul_i32", "s47", "s33", 448)
    e.salu("s_mul_i32", "s48", "s43", 112)
    e.salu("s_add_u32", "s47", "s47", "s48")
    e.salu("s_sub_u32", "s47", "s47", 448 * 14 - 1792)
    e.salu("s_cmp_ge_u32", "s33", 14)
    e.salu("s_cselect_b32", "s37", "s47", "s46")
    e.salu("s_cselect_b32", "s49", 56, 64)
    e.salu("s_mul_i32", "s47", "s45", "s44")
    e.salu("s_lshl_b32", "s47", "s47", 3)
    e.salu("s_add_u32", "s37", "s37", "s47")
    e.salu("s_lshl_b32", "s38", "s45", 4)
    e.salu("s_mul_i32", "s39", "s33", 112)
    e.salu("s_mul_i32", "s47", "s34", 8 * 2688)
    e.salu("s_add_u32", "s39", "s39", "s47")
    e.salu("s_lshl_b32", "s40", "s34", 10)
    e.valu("v_lshrrev_b32", "v6", "2", "v0")
    e.valu("v_and_b32", "v6", "4", "v6")
    e.valu("v_xor_b32", "v6", "v6", "v5")
    e.valu("v_lshlrev_b32", "v6", "4", "v6")
    e.valu("v_mul_lo_u32", "v15", "v4", "s45")
    e.valu("v_add_u32", "v15", "v15", "v6")
    e.valu("v_mul_u32_u24", "v3", "2688", "v4")
    e.valu("v_add_u32", "v3", "v3", "v6")

    def issue_unit(e, u):
        e.salu("s_add_u32", "m0", "s40", unit_slot(u) * 8192)
        if u < 28:
            e.dma(15, 24, "s37", tag=u)
            e.salu("s_add_u32", "s37", "s37", "s38")
        else:
            e.dma(3, 20, "s39", tag=u)
            e.salu("s_add_u32", "s39", "s39", 64 * 2688)

    for u in range(5):
        issue_unit(e, u)
    e.valu("v_xor_b32", "v7", "v4", "v5")
    e.valu("v_lshlrev_b32", "v7", "4", "v7")
    e.valu("v_lshl_add_u32", "v7", "v5", "9", "v7")
    e.salu("s_mul_i32", "s47", "s43", 28672)
    e.salu("s_lshl_b32", "s48", "s44", 8)
    e.salu("s_add_u32", "s47", "s47", "s48")
    e.valu("v_add_u32", "v7", "s47", "v7")
    e.salu("s_lshl_b32", "s47", "s34", 6)
    e.salu("s_add_u32", "s47", "s47", RINV_LDS)
    e.valu("v_lshl_add_u32", "v14", "v4", "2", "s47")
    e.salu("s_mov_b32", "s50", "0x3f803f80")
    e.salu("s_mov_b32", "s51", "0x00003f80")
    e.salu("s_mov_b32", "s52", "0x3f800000")
    T = ACC
    dpp = ["quad_perm:[1,0,3,2] row_mask:0xf bank_mask:0xf", "quad_perm:[2,3,0,1] row_mask:0xf bank_mask:0xf",
           "row_half_mirror row_mask:0xf bank_mask:0xf"]

    def red8(regs):
        for m in dpp:
            for r in regs:
                e.valu("v_add_f32_dpp", vr(r), vr(r), vr(r), mods=m)

    for rg in range(2):
        e.valu("v_mov_b32", vr(T + rg), "0")
        e.valu("v_mov_b32", vr(T + 2 + rg), "0")
        e.valu("v_mov_b32", vr(T + 4 + rg), "0")
    for rg in range(2):
        R = XR + 28 * rg
        for i in range(28):
            e.valu("v_dot2c_f32_bf16", vr(T + rg), "s50", vr(R + i))
        red8([T + rg])
        e.valu("v_mul_f32", vr(T + rg), hexf(1.0 / 448), vr(T + rg))
        e.valu("v_cvt_pk_bf16_f32", vr(T + 6), vr(T + rg), vr(T + rg))
        e.valu("v_and_b32", vr(T + 6), "0xffff0000", vr(T + 6))
        e.valu("v_sub_f32", vr(T + rg), vr(T + rg), vr(T + 6))
        e.valu("v_xor_b32", vr(T + 6), "0x80000000", vr(T + 6))
        for c in range(7):
            D = T + 8 + 8 * (c & 1)
            for i in range(4):
                e.valu("v_dot2_f32_bf16", vr(D + 2 * i), vr(R + 4 * c + i), "s51", vr(T + 6))
                e.valu("v_dot2_f32_bf16", vr(D + 2 * i + 1), vr(R + 4 * c + i), "s52", vr(T + 6))
            for i in range(4):
                e.valu("v_cvt_pk_bf16_f32", vr(R + 4 * c + i), vr(D + 2 * i), vr(D + 2 * i + 1))
            e.ds_write("ds_write_b128", 7, R + 4 * c, 4, rg * 128 + c * 4096)
            for i in range(4):
                e.valu("v_fmac_f32", vr(T + 2 + rg), vr(D + 2 * i), vr(D + 2 * i))
                e.valu("v_fmac_f32", vr(T + 4 + rg), vr(D + 2 * i + 1), vr(D + 2 * i + 1))
    for rg in range(2):
        e.valu("v_add_f32", vr(T + 2 + rg), vr(T + 2 + rg), vr(T + 4 + rg))
    red8([T + 2, T + 3])
    for rg in range(2):
        e.valu("v_mul_f32", vr(T + rg), vr(T + rg), vr(T + rg))
    for rg in range(2):
        e.salu("s_mov_b32", "s47", hexf(1.0 / 448))
        e.valu("v_fma_f32", vr(T + rg), vr(T + 2 + rg), "s47", "-" + vr(T + rg))
    e.valu("v_cvt_pk_bf16_f32", vr(T + 2), vr(T), vr(T + 1))
    e.valu("v_lshlrev_b32", vr(T), "16", vr(T + 2))
    e.valu("v_and_b32", vr(T + 1), "0xffff0000", vr(T + 2))
    e.valu("v_add_f32", vr(T), hexf(1e-5), vr(T))
    e.valu("v_add_f32", vr(T + 1), hexf(1e-5), vr(T + 1))
    e.valu("v_cvt_pk_bf16_f32", vr(T + 2), vr(T), vr(T + 1))
    e.valu("v_lshlrev_b32", vr(T), "16", vr(T + 2))
    e.valu("v_and_b32", vr(T + 1), "0xffff0000", vr(T + 2))
    e.valu("v_sqrt_f32", vr(T), vr(T))
    e.valu("v_sqrt_f32", vr(T + 1), vr(T + 1))
    e.valu("v_cvt_pk_bf16_f32", vr(T + 2), vr(T), vr(T + 1))
    e.valu("v_lshlrev_b32", vr(T), "16", vr(T + 2))
    e.valu("v_and_b32", vr(T + 1), "0xffff0000", vr(T + 2))
    e.valu("v_rcp_f32", vr(T), vr(T))
    e.valu("v_rcp_f32", vr(T + 1), vr(T + 1))
    e.nop(1)
    e.ds_write("ds_write_b32", 14, T, 1, 0)
    e.ds_write("ds_write_b32", 14, T + 1, 1, 32)
    e.valu("v_lshlrev_b32", "v1", "4", "v0")
    e.valu("v_lshrrev_b32", vr(T + 8), "5", "v0")
    e.valu("v_and_b32", vr(T + 9), "31", "v0")
    e.salu("s_mul_i32", "s47", "s36", 28672)
    e.valu("v_lshl_add_u32", vr(T + 10), vr(T + 8), "9", "s47")
    e.valu("v_xor_b32", vr(T + 11), vr(T + 9), vr(T + 8))
    for j in range(4):
        e.valu("v_xor_b32", vr(T + 12), str(2 * j), vr(T + 11))
        e.valu("v_lshl_add_u32", vr(4 + j), vr(T + 12), "4", vr(T + 10))
    e.valu("v_bfe_u32", vr(T + 12), "v0", "2", "2")
    e.valu("v_lshl_add_u32", vr(T + 12), vr(T + 8), "3", vr(T + 12))
    e.valu("v_lshlrev_b32", vr(T + 12), "7", vr(T + 12))
    e.valu("v_and_b32", vr(T + 13), "16", "v0")
    e.valu("v_lshlrev_b32", vr(T + 13), "1", vr(T + 13))
    e.valu("v_and_b32", vr(T + 14), "3", "v0")
    e.valu("v_lshl_add_u32", vr(T + 13), vr(T + 14), "3", vr(T + 13))
    e.valu("v_and_b32", vr(T + 14), "8", "v0")
    e.valu("v_lshlrev_b32", vr(T + 14), "3", vr(T + 14))
    e.salu("s_lshl_b32", "s47", "s35", 12)
    e.valu("v_xor_b32", "v8", vr(T + 13), vr(T + 14))
    e.valu("v_add3_u32", "v8", "v8", vr(T + 12), "s47")
    e.valu("v_add_u32", "v11", "s49", vr(T + 13))
    e.valu("v_xor_b32", "v11", "v11", vr(T + 14))
    e.valu("v_add3_u32", "v11", "v11", vr(T + 12), "s47")
    e.salu("s_mul_i32", "s47", "s35", 56)
    e.valu("v_add_u32", "v2", "s47", vr(T + 13))
    e.valu("v_xor_b32", "v2", "v2", vr(T + 14))
    e.valu("v_add_u32", "v2", "v2", vr(T + 12))
    for b in (8, 11):
        e.valu("v_add_u32", vr(b + 1), "0x10000", vr(b))
        e.valu("v_add_u32", vr(b + 2), "0x20000", vr(b))
    e.salu("s_lshl_b32", "s47", "s36", 7)
    e.salu("s_add_u32", "s47", "s47", RINV_LDS)
    e.valu("v_lshl_add_u32", vr(T + 12), vr(T + 9), "2", "s47")
    e.valu("v_lshl_add_u32", vr(T + 13), vr(T + 8), "4", "s47")
    e.wait(vm=0, lgkm=0)
    e.barrier()
    e.ds_read("ds_read_b32", 14, 1, T + 12)
    for i in range(4):
        e.ds_read("ds_read_b128", TMP + 4 * i, 4, T + 13, 32 * i)

    def tr_frag(e, dst, areg3, byte):
        seg, off = byte >> 16, byte & 0xffff
        e.ds_read("ds_read_b64_tr_b16", dst, 2, areg3 + seg, off)
        e.ds_read("ds_read_b64_tr_b16", dst + 2, 2, areg3 + seg, off + 512)

    def gu_frag(e, j, i):
        tr_frag(e, WF + 16 * (j & 1) + 4 * i, 8 + 3 * (i & 1), unit_slot(j) * 8192 + (i >> 1) * 2048)

    def xf_read(e, j):
        e.ds_read("ds_read_b128", XF + 4 * j, 4, 4 + (j & 3), j * 1024)

    xf_read(e, 0)
    for i in range(4):
        gu_frag(e, 0, i)
    for j in range(1, 8):
        xf_read(e, j)
    e.salu("s_lshl_b32", "s53", "s32", 2)
    e.salu("s_add_u32", "s53", "s53", "s36")
    e.salu("s_cmp_ge_u32", "s33", 14)
    e.salu("s_cbranch_scc1", "K1_VTYPE")

    plan = {
        2: (4, list(range(5, 20))),
        4: (9, []),
        9: (19, list(range(20, 29))),
        19: (28, list(range(29, 35))),
        28: (34, []),
    }

    def main(e, vtype):
        pend = []
        xnext = 8

        def qk_frag(e, j):
            u = 28 + j // 4
            tr_frag(e, WF + 4 * (j & 1), 4, unit_slot(u) * 8192 + (j & 3) * 2048)

        def sync(j):
            nonlocal pend
            landed, new = plan[j]
            assert not pend
            e.wait_tag(landed)
            e.wait(lgkm=0)
            e.barrier()
            pend = list(new)

        for j in range(28):
            if j in plan:
                sync(j)
            if j == 2:
                e.valu("v_mov_b32", "v4", "v2")
                e.valu("v_add_u32", "v5", "0x10000", "v2")
                e.valu("v_add_u32", "v6", "0x20000", "v2")
            for i in range(4):
                a, b = WF + 16 * (j & 1) + 4 * i, XF + 4 * j
                if vtype:
                    a, b = b, a
                e.mfma(ACC + 16 * i, a, b, "0" if j == 0 else None)
                if j + 1 < 28:
                    gu_frag(e, j + 1, i)
                elif i == 0:
                    qk_frag(e, 0)
                for _ in range(3):
                    if xnext < 28:
                        xf_read(e, xnext)
                        xnext += 1
                for _ in range(2):
                    if pend:
                        issue_unit(e, pend.pop(0))
        q = []
        if not vtype:
            c1 = 2.0 * 0.7978845608028654 * 1.4426950408889634
            A1, A2, KK = TMP, TMP + 1, TMP + 2
            q.append(lambda: e.valu("v_mul_f32", vr(KK), "v14", "v14"))
            q.append(lambda: e.valu("v_mul_f32", vr(A1), hexf(-c1), "v14"))
            q.append(lambda: e.valu("v_mul_f32", vr(A2), hexf(0.044715), vr(KK)))
            q.append(lambda: e.valu("v_rcp_f32", vr(KK), vr(KK)))
            q.append(lambda: e.valu("v_mul_f32", vr(A2), vr(A2), vr(A1)))
            q.append(lambda: e.salu("s_mul_i32", "s54", "s53", 112))
            q.append(lambda: e.salu("s_lshl_b32", "s55", "s33", 3))
            q.append(lambda: e.salu("s_add_u32", "s54", "s54", "s55"))
            q.append(lambda: e.salu("s_lshl_b32", "s55", "s35", 2))
            q.append(lambda: e.salu("s_add_u32", "s54", "s54", "s55"))
            q.append(lambda: e.salu("s_lshl_b32", "s54", "s54", 10))
            q.append(lambda: e.salu("s_add_u32", "s54", "s54", hex(WS_H)))
            for p in range(2):
                for a in range(2):
                    for hh in range(2):
                        G = ACC + 16 * p + 8 * a + 4 * hh
                        U = ACC + 32 + 16 * p + 8 * a + 4 * hh
                        t = TMP + 4 + 4 * hh
                        P = WF + 8 + 4 * (2 * p + a)
                        for i in range(4):
                            q.append(lambda i=i, G=G, t=t: e.valu("v_mul_f32", vr(t + i), vr(G + i), vr(G + i)))
                        for i in range(4):
                            q.append(lambda i=i, t=t: e.valu("v_fma_f32", vr(t + i), vr(t + i), vr(A2), vr(A1)))
                        for i in range(4):
                            q.append(lambda i=i, G=G, t=t: e.valu("v_mul_f32", vr(t + i), vr(t + i), vr(G + i)))
                        for i in range(4):
                            q.append(lambda i=i, t=t: e.valu("v_exp_f32", vr(t + i), vr(t + i)))
                        for i in range(4):
                            q.append(lambda i=i, G=G, U=U: e.valu("v_mul_f32", vr(G + i), vr(G + i), vr(U + i)))
                        for i in range(4):
                            q.append(lambda i=i, t=t: e.valu("v_fma_f32", vr(t + i), vr(t + i), vr(KK), vr(KK)))
                        for i in range(4):
                            q.append(lambda i=i, t=t: e.valu("v_rcp_f32", vr(t + i), vr(t + i)))
                        for i in range(4):
                            q.append(lambda i=i, G=G, t=t: e.valu("v_mul_f32", vr(G + i), vr(G + i), vr(t + i)))
                        for i in range(2):
                            q.append(lambda i=i, G=G, P=P, hh=hh: e.valu("v_cvt_pk_bf16_f32", vr(P + 2 * hh + i), vr(G + 2 * i), vr(G + 2 * i + 1)))
                    q.append(lambda P=P, p=p, a=a: e.bstore(P, 4, 1, 28, "s54", (2 * p + a) * 1024))
        else:
            M, ONE = 12, 13
            q.append(lambda: e.valu("v_and_b32", vr(ONE), "31", "v0"))
            q.append(lambda: e.valu("v_cmp_gt_u32", "vcc", "28", vr(ONE)))
            q.append(lambda: e.valu("v_cndmask_b32", vr(M), "0", "1.0", "vcc"))
            q.append(lambda: e.valu("v_cmp_eq_u32", "vcc", "28", vr(ONE)))
            q.append(lambda: e.valu("v_cndmask_b32", vr(ONE), "0", "1.0", "vcc"))
            for i in range(16):
                q.append(lambda i=i: e.valu("v_mul_f32", vr(TMP + i), vr(TMP + i), vr(M)))
            q.append(lambda: e.salu("s_lshl_b32", "s54", "s33", 3))
            q.append(lambda: e.salu("s_lshl_b32", "s55", "s35", 2))
            q.append(lambda: e.salu("s_add_u32", "s54", "s54", "s55"))
            q.append(lambda: e.salu("s_sub_u32", "s54", "s54", 112))
            q.append(lambda: e.salu("s_lshl_b32", "s54", "s54", 6))
            q.append(lambda: e.salu("s_add_u32", "s54", "s54", "s53"))
            q.append(lambda: e.salu("s_lshl_b32", "s54", "s54", 12))
            q.append(lambda: e.salu("s_add_u32", "s54", "s54", hex(WS_KV)))
            for t in range(4):
                for a in range(2):
                    G = ACC + 16 * t + 8 * a
                    P = WF + 8 + 4 * ((2 * t + a) % 6)
                    for i in range(8):
                        q.append(lambda i=i, G=G, a=a: e.valu("v_fma_f32", vr(G + i), vr(G + i), vr(TMP + 8 * a + i), vr(ONE)))
                    for i in range(4):
                        q.append(lambda i=i, G=G, P=P: e.valu("v_cvt_pk_bf16_f32", vr(P + i), vr(G + 2 * i), vr(G + 2 * i + 1)))
                    q.append(lambda P=P, a=a: e.bstore(P, 4, 1, 28, "s54", 2048 + a * 1024))
                q.append(lambda: e.salu("s_add_u32", "s54", "s54", 64 * 4096))
        per = (len(q) + 26) // 27
        for j in range(28):
            if j == 0:
                sync(28)
            e.mfma(ACCQ, WF + 4 * (j & 1), XF + 4 * j, "0" if j == 0 else None)
            if j + 1 < 28:
                qk_frag(e, j + 1)
            if j >= 1:
                for _ in range(per):
                    if q:
                        q.pop(0)()
        assert not q
        e.salu("s_lshl_b32", "s54", "s33", 1)
        e.salu("s_add_u32", "s54", "s54", "s35")
        e.salu("s_and_b32", "s55", "s54", 15)
        e.salu("s_lshl_b32", "s55", "s55", 6)
        e.salu("s_add_u32", "s55", "s55", "s53")
        e.salu("s_lshl_b32", "s56", "s55", 11)
        e.salu("s_lshl_b32", "s57", "s55", 12)
        e.salu("s_add_u32", "s57", "s57", hex(WS_KV))
        e.salu("s_cmp_ge_u32", "s54", 16)
        e.salu("s_cselect_b32", "s56", "s57", "s56")
        e.salu("s_cselect_b32", "s57", "1.0", hexf(28 ** -0.5 * 1.4426950408889634))
        e.salu("s_cselect_b32", "s58", "1.0", "0")
        e.valu("v_mul_f32", "v14", "s57", "v14")
        e.valu("v_cmp_gt_u32", "vcc", "32", "v0")
        e.valu("v_mov_b32", "v9", "s58")
        e.valu("v_cndmask_b32", "v8", "0", "v14", "vcc")
        e.valu("v_cndmask_b32", "v9", "v9", "0", "vcc")
        for i in range(12):
            e.valu("v_mul_f32", vr(ACCQ + i), vr(ACCQ + i), "v14")
        e.valu("v_fma_f32", vr(ACCQ + 12), vr(ACCQ + 12), "v8", "v9")
        for i in range(13, 16):
            e.valu("v_mul_f32", vr(ACCQ + i), vr(ACCQ + i), "v8")
        for i in range(8):
            e.valu("v_cvt_pk_bf16_f32", vr(WF + i), vr(ACCQ + 2 * i), vr(ACCQ + 2 * i + 1))
        e.bstore(WF, 4, 1, 28, "s56", 0)
        e.bstore(WF + 4, 4, 1, 28, "s56", 1024)
        e.salu("s_endpgm")

    ev = e.fork()
    main(e, False)
    ev.label("K1_VTYPE")
    main(ev, True)
    ev.label("K1_END")
    ev.salu("s_endpgm")
    return e.text() + ev.text(), dict(vgpr=256, sgpr=64, lds=163840, block=512, grid=256)
```

```python
from emit import *
from gen_k1 import *

QF = 16
OA = 24
SS = 40
PP = 72
KV = 80
GA = 128
HF = 160
NH = 6
WF2 = 184
T2 = 200
OFFS = 64.0

def gen_k2(name, prio=True):
    e = Emit()
    e.raw(f".p2align 8\n.globl {name}\n.type {name},@function\n{name}:")
    e.salu("s_cmp_ge_u32", "s2", 256)
    e.salu("s_cbranch_scc1", "K2_END")
    e.raw("    s_load_dwordx2 s[4:5], s[0:1], 48")
    e.raw("    s_load_dwordx2 s[12:13], s[0:1], 72")
    e.salu("s_and_b32", "s30", "s2", 7)
    e.salu("s_lshr_b32", "s31", "s2", 3)
    e.salu("s_lshl_b32", "s32", "s30", 1)
    e.salu("s_lshr_b32", "s3", "s31", 4)
    e.salu("s_add_u32", "s32", "s32", "s3")
    e.salu("s_and_b32", "s33", "s31", 15)
    e.valu("v_lshrrev_b32", "v1", "6", "v0")
    e.valu("v_and_b32", "v0", "63", "v0")
    e.valu("v_readfirstlane_b32", "s34", "v1")
    e.valu("v_lshlrev_b32", "v1", "4", "v0")
    e.salu("s_lshr_b32", "s35", "s34", 2)
    e.salu("s_and_b32", "s36", "s34", 3)
    e.salu("s_lshl_b32", "s40", "s34", 10)
    e.salu("s_lshl_b32", "s41", "s33", 2)
    e.salu("s_add_u32", "s41", "s41", "s36")
    e.salu("s_lshl_b32", "s42", "s32", 6)
    e.salu("s_add_u32", "s42", "s42", "s41")
    e.salu("s_lshl_b32", "s42", "s42", 11)
    e.salu("s_lshl_b32", "s43", "s32", 18)
    e.salu("s_add_u32", "s43", "s43", hex(WS_KV))
    e.salu("s_add_u32", "s37", "s43", "s40")
    e.raw("    s_waitcnt lgkmcnt(0)")
    e.pos += 4
    srd(e, 16, 12, WS_SIZE)
    e.bload(QF, 4, 1, 16, "s42", 0)
    e.bload(QF + 4, 4, 1, 16, "s42", 1024)

    units = [("kv", t, t - 2, t - 2) for t in range(32)] + [("w", n, 2 * n, 2 * n + 1) for n in range(14)]
    units.sort(key=lambda u: (u[2], u[0] == "w"))
    uidx = {(u[0], u[1]): i for i, u in enumerate(units)}
    slot = lambda kind, n: (uidx[(kind, n)] % 20) * 8192

    def issue_unit(i):
        e.salu("s_add_u32", "m0", "s40", (i % 20) * 8192)
        if units[i][0] == "kv":
            e.dma(1, 16, "s37", tag=i)
            e.salu("s_add_u32", "s37", "s37", 8192)
        else:
            e.dma(2, 20, "s38", tag=i)
            e.salu("s_add_u32", "s38", "s38", 32 * 896)

    for i in range(3):
        issue_unit(i)
    srd(e, 20, 4, 1605632)
    srd(e, 24, 12, WS_SIZE)
    e.salu("s_sub_u32", "s3", "s31", 4)
    e.salu("s_cmp_ge_u32", "s31", 28)
    e.salu("s_cselect_b32", "s44", "s3", "s31")
    e.salu("s_cselect_b32", "s26", 0, "s26")
    e.salu("s_mul_i32", "s45", "s44", 37)
    e.salu("s_lshr_b32", "s45", "s45", 8)
    e.salu("s_mul_i32", "s3", "s45", 7)
    e.salu("s_sub_u32", "s46", "s44", "s3")
    e.salu("s_lshr_b32", "s3", "s30", 1)
    e.salu("s_lshl_b32", "s3", "s3", 2)
    e.salu("s_add_u32", "s45", "s45", "s3")
    e.salu("s_and_b32", "s47", "s30", 1)
    e.salu("s_lshl_b32", "s48", "s45", 2)
    e.salu("s_add_u32", "s48", "s48", "s36")
    e.salu("s_lshl_b32", "s3", "s47", 1)
    e.salu("s_add_u32", "s49", "s3", "s35")
    e.salu("s_mul_i32", "s38", "s49", 448 * 896)
    e.salu("s_mul_i32", "s3", "s36", 8 * 896)
    e.salu("s_add_u32", "s38", "s38", "s3")
    e.salu("s_lshl_b32", "s3", "s46", 7)
    e.salu("s_add_u32", "s38", "s38", "s3")
    e.salu("s_mul_i32", "s39", "s48", 112)
    e.salu("s_mul_i32", "s3", "s49", 28)
    e.salu("s_add_u32", "s39", "s39", "s3")
    e.salu("s_lshl_b32", "s39", "s39", 10)
    e.salu("s_add_u32", "s39", "s39", hex(WS_H))
    e.valu("v_lshrrev_b32", "v4", "3", "v0")
    e.valu("v_and_b32", "v5", "7", "v0")
    e.valu("v_lshrrev_b32", "v6", "2", "v0")
    e.valu("v_and_b32", "v6", "4", "v6")
    e.valu("v_xor_b32", "v6", "v6", "v5")
    e.valu("v_mul_u32_u24", "v2", "896", "v4")
    e.valu("v_lshl_add_u32", "v2", "v6", "4", "v2")
    hnext = [0]

    def issue_h():
        m = hnext[0]
        if m >= 28:
            return
        e.bload(HF + 4 * (m % NH), 4, 1, 16, "s39", (m & 3) * 1024)
        if m & 3 == 3:
            e.salu("s_add_u32", "s39", "s39", 4096)
        hnext[0] += 1

    for i in range(3, 20):
        issue_unit(i)
        if i in (3, 5, 7, 9):
            issue_h()
    T = T2
    e.salu("s_lshl_b32", "s50", "s35", 12)
    e.valu("v_add_u32", "v3", "s50", "v1")
    e.valu("v_add_u32", "v4", "0x10000", "v3")
    e.valu("v_add_u32", "v5", "0x20000", "v3")
    e.valu("v_lshrrev_b32", vr(T), "5", "v0")
    e.valu("v_bfe_u32", vr(T + 1), "v0", "2", "2")
    e.valu("v_lshl_add_u32", vr(T + 1), vr(T), "2", vr(T + 1))
    e.valu("v_lshlrev_b32", vr(T + 1), "7", vr(T + 1))
    e.valu("v_and_b32", vr(T + 2), "16", "v0")
    e.valu("v_lshlrev_b32", vr(T + 2), "1", vr(T + 2))
    e.valu("v_and_b32", vr(T + 3), "3", "v0")
    e.valu("v_lshl_add_u32", vr(T + 2), vr(T + 3), "3", vr(T + 2))
    e.valu("v_and_b32", vr(T + 3), "8", "v0")
    e.valu("v_lshlrev_b32", vr(T + 3), "3", vr(T + 3))
    e.valu("v_xor_b32", vr(T + 2), vr(T + 2), vr(T + 3))
    e.valu("v_add3_u32", "v6", vr(T + 2), vr(T + 1), "s50")
    e.valu("v_xor_b32", "v9", "64", "v6")
    for b in (6, 9):
        e.valu("v_add_u32", vr(b + 1), "0x10000", vr(b))
        e.valu("v_add_u32", vr(b + 2), "0x20000", vr(b))
    e.valu("v_cmp_lt_u32", "s[52:53]", "31", "v0")

    bars = [-2, 1, 5, 11, 17, 23]
    issued = 20

    def confirm_upto(p):
        nxt = [b for b in bars if b > p]
        lim = nxt[0] if nxt else 99
        return max(i for i, u in enumerate(units) if u[2] < lim)

    def kv_read(t, f):
        byte = slot("kv", t) + f * 1024
        e.ds_read("ds_read_b128", KV + 16 * (t % 3) + 4 * f, 4, 3 + (byte >> 16), byte & 0xffff)

    def w_read(m, ct):
        byte = slot("w", m // 2) + (m & 1) * 2048
        d = WF2 + 8 * (m & 1) + 4 * ct
        a = 6 + 3 * ct + (byte >> 16)
        e.ds_read("ds_read_b64_tr_b16", d, 2, a, byte & 0xffff)
        e.ds_read("ds_read_b64_tr_b16", d + 2, 2, a, (byte & 0xffff) + 1024)

    e.wait_tag(confirm_upto(-2))
    e.barrier()
    e.ds_read("ds_read_b128", KV + 32, 4, 1, 0)
    e.ds_read("ds_read_b128", KV + 36, 4, 1, 1024)
    for t in range(2):
        for f in range(4):
            kv_read(t, f)
    S1 = SS + 16
    e.mfma(S1, KV + 32, QF, "0")
    e.mfma(S1, KV + 36, QF + 4)
    e.valu("v_max3_f32", vr(T), vr(S1), vr(S1 + 1), vr(S1 + 2))
    e.valu("v_max3_f32", vr(T + 1), vr(S1 + 3), vr(S1 + 4), vr(S1 + 5))
    e.valu("v_max3_f32", vr(T + 2), vr(S1 + 6), vr(S1 + 7), vr(S1 + 8))
    e.valu("v_max3_f32", vr(T + 3), vr(S1 + 9), vr(S1 + 10), vr(S1 + 11))
    e.valu("v_max3_f32", vr(T), vr(T), vr(S1 + 12), vr(S1 + 13))
    e.valu("v_max3_f32", vr(T + 1), vr(T + 1), vr(S1 + 14), vr(S1 + 15))
    e.valu("v_max3_f32", vr(T), vr(T), vr(T + 1), vr(T + 2))
    e.valu("v_max_f32", vr(T), vr(T), vr(T + 3))
    e.valu("v_mov_b32", vr(T + 1), vr(T))
    e.valu("v_permlane32_swap_b32", vr(T), vr(T + 1))
    e.valu("v_max_f32", vr(T), vr(T), vr(T + 1))
    e.valu("v_sub_f32", vr(T), hexf(-OFFS), vr(T))
    e.valu("v_cvt_pk_bf16_f32", vr(T), vr(T), "0")
    e.valu("v_cndmask_b32", vr(QF + 6), vr(QF + 6), vr(T), "s[52:53]")
    e.mfma(SS, KV, QF, "0")
    e.mfma(SS, KV + 4, QF + 4)

    pend = []
    for t in range(32):
        if t in bars:
            assert not pend
            e.wait_tag(confirm_upto(t))
            e.wait(lgkm=0)
            e.barrier()
            while issued < len(units) and units[issued - 20][3] < t:
                pend.append(issued)
                issued += 1
        if prio:
            p0 = max(b for b in bars + [0] if b <= t)
            p1 = min([b for b in bars if b > t] + [32])
            pr = 3 - (4 * (t - p0)) // (p1 - p0)
            e.salu("s_setprio", pr)
        S = SS + 16 * (t & 1)
        Sn = SS + 16 * ((t + 1) & 1)
        kvc = KV + 16 * (t % 3)
        kvn = KV + 16 * ((t + 1) % 3)
        kvp = KV + 16 * ((t - 1) % 3)
        m = t - 1
        g = 0 <= m < 28
        gr = t < 28
        mf = []
        if t + 1 < 32:
            mf.append(lambda: e.mfma(Sn, kvn, QF, "0"))
        if t > 0:
            mf.append(lambda: e.mfma(OA, kvp + 12, PP + 4))
        if t + 1 < 32:
            mf.append(lambda: e.mfma(Sn, kvn + 4, QF + 4))
        n1 = len(mf)
        if g:
            mf.append(lambda: e.mfma(GA, WF2 + 8 * (m & 1), HF + 4 * (m % NH), "0" if m == 0 else None))
        mf.append(lambda: e.mfma(OA, kvc + 8, PP, "0" if t == 0 else None))
        if g:
            mf.append(lambda: e.mfma(GA + 16, WF2 + 8 * (m & 1) + 4, HF + 4 * (m % NH), "0" if m == 0 else None))
        side = []
        if t + 2 < 32:
            side += [lambda f=f: kv_read(t + 2, f) for f in (0, 1, 2)]
        if gr:
            side += [lambda: w_read(t, 0)]
        if t + 2 < 32:
            side += [lambda: kv_read(t + 2, 3)]
        if gr:
            side += [lambda: w_read(t, 1)]
        ld = []
        if t >= 0:
            ld.append(issue_h)
        for _ in range(3):
            if pend:
                ld.append(lambda i=pend.pop(0): issue_unit(i))
        va = []
        for hh in range(2):
            for i in range(8):
                va.append((8, lambda r=S + 8 * hh + i: e.valu("v_exp_f32", vr(r), vr(r))))
                if i >= 3 and i % 2 == 1:
                    k = (i - 3) // 2
                    va.append((4, lambda k=k, hh=hh: e.valu("v_cvt_pk_bf16_f32", vr(PP + 4 * hh + k), vr(S + 8 * hh + 2 * k), vr(S + 8 * hh + 2 * k + 1))))
            va.append((4, lambda hh=hh: e.valu("v_cvt_pk_bf16_f32", vr(PP + 4 * hh + 3), vr(S + 8 * hh + 6), vr(S + 8 * hh + 7))))
        halves = [va[:12], va[12:]]
        groups = [(mf[:n1], halves[0]), (mf[n1:], halves[1])]
        nm = len(mf)
        mi = 0
        for ms, vs in groups:
            tot = sum(c for c, _ in vs)
            acc = 0
            k = 0
            for j, mm in enumerate(ms):
                mm()
                mi += 1
                ns = -(-len(side) // (nm - mi + 1))
                for _ in range(ns):
                    side.pop(0)()
                if ld:
                    ld.pop(0)()
                while k < len(vs) and (acc + vs[k][0] / 2 <= tot * (j + 1) / len(ms) or j == len(ms) - 1):
                    vs[k][1]()
                    acc += vs[k][0]
                    k += 1
        assert not side
        while ld:
            ld.pop(0)()
    assert issued == len(units) and not pend
    e.mfma(OA, KV + 16 * (31 % 3) + 12, PP + 4)
    if prio:
        e.salu("s_setprio", 0)
    for i in range(26, 34):
        assert units[i][3] < bars[-1] and i + 20 >= len(units)
    XB = (26 % 20) * 8192
    assert XB + 49152 < 65536 + 65536
    e.salu("s_lshl_b32", "s50", "s34", 12)
    e.salu("s_add_u32", "s50", "s50", XB)
    e.valu("v_add_u32", "v3", "s50", "v1")
    e.salu("s_xor_b32", "s50", "s34", 4)
    e.salu("s_lshl_b32", "s50", "s50", 12)
    e.salu("s_add_u32", "s50", "s50", XB)
    e.valu("v_add_u32", "v4", "s50", "v1")
    e.salu("s_lshl_b32", "s50", "s36", 12)
    e.salu("s_add_u32", "s50", "s50", XB + 32768)
    e.valu("v_add_u32", "v5", "s50", "v1")
    e.salu("s_lshl_b32", "s50", "s47", 6)
    e.salu("s_add_u32", "s50", "s50", "s48")
    e.salu("s_mul_i32", "s50", "s50", 14)
    e.salu("s_lshl_b32", "s51", "s46", 1)
    e.salu("s_add_u32", "s50", "s50", "s51")
    e.salu("s_add_u32", "s50", "s50", "s35")
    e.salu("s_lshl_b32", "s50", "s50", 12)
    e.salu("s_add_u32", "s50", "s50", hex(WS_P))
    e.salu("s_cmp_eq_u32", "s35", 0)
    e.salu("s_cbranch_scc1", "K2_KH0")
    e0 = e.fork()
    for i in range(4):
        e.ds_write("ds_write_b128", 3, GA + 4 * i, 4, 1024 * i)
    for i in range(4):
        e.ds_write("ds_write_b128", 5, OA + 4 * i, 4, 1024 * i)
    e.wait(lgkm=0)
    e.barrier()
    for i in range(4):
        e.ds_read("ds_read_b128", SS + 4 * i, 4, 4, 1024 * i)
    for i in range(4):
        for j in range(4):
            e.valu("v_add_f32", vr(GA + 16 + 4 * i + j), vr(GA + 16 + 4 * i + j), vr(SS + 4 * i + j))
        e.bstore(GA + 16 + 4 * i, 4, 1, 24, "s50", 1024 * i)
    e.salu("s_endpgm")
    f = e0
    f.label("K2_KH0")
    for i in range(4):
        f.ds_write("ds_write_b128", 3, GA + 16 + 4 * i, 4, 1024 * i)
    f.wait(lgkm=0)
    f.barrier()
    for i in range(4):
        f.ds_read("ds_read_b128", SS + 16 + 4 * i, 4, 5, 1024 * i)
    for i in range(4):
        f.ds_read("ds_read_b128", SS + 4 * i, 4, 4, 1024 * i)
    for i in range(16):
        f.valu("v_add_f32", vr(OA + i), vr(OA + i), vr(SS + 16 + i))
    for i in range(4):
        for j in range(4):
            f.valu("v_add_f32", vr(GA + 4 * i + j), vr(GA + 4 * i + j), vr(SS + 4 * i + j))
        f.bstore(GA + 4 * i, 4, 1, 24, "s50", 1024 * i)
    f.valu("v_mov_b32", vr(T), vr(OA + 12))
    f.valu("v_mov_b32", vr(T + 1), vr(OA + 12))
    f.valu("v_mul_f32", vr(T + 2), "0", vr(OA))
    f.valu("v_permlane32_swap_b32", vr(T), vr(T + 1))
    for i in range(1, 16):
        f.valu("v_fmac_f32", vr(T + 2), "0", vr(OA + i))
    f.valu("v_add_f32", vr(T + 2), vr(T + 2), vr(T + 1))
    f.valu("v_cmp_nle_f32", "vcc", hexf(2.0 ** -100), vr(T + 2))
    f.salu("s_mov_b32", "s51", hexf(2.0 ** 120))
    f.valu("v_cmp_nge_f32", "s[54:55]", "s51", vr(T + 2))
    f.salu("s_or_b64", "vcc", "vcc", "s[54:55]")
    f.nop(4)
    f.salu("s_cbranch_vccnz", "K2_SLOW")
    f.label("K2_FIN")
    f.valu("v_rcp_f32", vr(T + 1), vr(T + 1))
    f.salu("s_lshl_b32", "s50", "s41", 5)
    f.salu("s_lshl_b32", "s51", "s32", 1)
    f.salu("s_add_u32", "s50", "s50", "s51")
    f.salu("s_lshl_b32", "s50", "s50", 10)
    f.salu("s_add_u32", "s50", "s50", hex(WS_O))
    f.valu("v_cndmask_b32", vr(T), vr(T + 1), "0", "s[52:53]")
    for i in range(16):
        f.valu("v_mul_f32", vr(OA + i), vr(OA + i), vr(T if i == 12 else T + 1))
    for i in range(8):
        f.valu("v_cvt_pk_bf16_f32", vr(PP + i), vr(OA + 2 * i), vr(OA + 2 * i + 1))
    f.bstore(PP, 4, 1, 16, "s50", 0)
    f.bstore(PP + 4, 4, 1, 16, "s50", 1024)
    f.salu("s_endpgm")
    s = Emit()
    s.label("K2_SLOW")
    s.wait_force("vmcnt(0) lgkmcnt(0)")
    s.valu("v_cndmask_b32", vr(QF + 6), vr(QF + 6), "0", "s[52:53]")
    s.valu("v_mov_b32", vr(T), "0xff800000")
    s.salu("s_mov_b32", "s56", "s43")
    s.salu("s_mov_b32", "s57", 64)
    s.label("K2_SLOW1")
    s.bload(KV, 4, 1, 16, "s56", 0)
    s.bload(KV + 4, 4, 1, 16, "s56", 1024)
    s.mfma(SS, KV, QF, "0")
    s.mfma(SS, KV + 4, QF + 4)
    for i in range(8):
        s.valu("v_max3_f32", vr(T), vr(T), vr(SS + 2 * i), vr(SS + 2 * i + 1))
    s.salu("s_add_u32", "s56", "s56", 4096)
    s.salu("s_sub_u32", "s57", "s57", 1)
    s.salu("s_cmp_lg_u32", "s57", 0)
    s.salu("s_cbranch_scc1", "K2_SLOW1")
    s.valu("v_mov_b32", vr(T + 1), vr(T))
    s.valu("v_permlane32_swap_b32", vr(T), vr(T + 1))
    s.valu("v_max_f32", vr(T), vr(T), vr(T + 1))
    for i in range(16):
        s.valu("v_mov_b32", vr(OA + i), "0")
    s.salu("s_mov_b32", "s56", "s43")
    s.salu("s_mov_b32", "s57", 64)
    s.label("K2_SLOW2")
    for i in range(4):
        s.bload(KV + 4 * i, 4, 1, 16, "s56", 1024 * i)
    s.mfma(SS, KV, QF, "0")
    s.mfma(SS, KV + 4, QF + 4)
    for i in range(16):
        s.valu("v_sub_f32", vr(SS + i), vr(SS + i), vr(T))
    for i in range(16):
        s.valu("v_exp_f32", vr(SS + i), vr(SS + i))
    for i in range(8):
        s.valu("v_cvt_pk_bf16_f32", vr(PP + i), vr(SS + 2 * i), vr(SS + 2 * i + 1))
    s.mfma(OA, KV + 8, PP)
    s.mfma(OA, KV + 12, PP + 4)
    s.salu("s_add_u32", "s56", "s56", 4096)
    s.salu("s_sub_u32", "s57", "s57", 1)
    s.salu("s_cmp_lg_u32", "s57", 0)
    s.salu("s_cbranch_scc1", "K2_SLOW2")
    s.nop(16)
    s.valu("v_mov_b32", vr(T), vr(OA + 12))
    s.valu("v_mov_b32", vr(T + 1), vr(OA + 12))
    s.valu("v_permlane32_swap_b32", vr(T), vr(T + 1))
    s.salu("s_branch", "K2_FIN")
    s.label("K2_END")
    s.salu("s_endpgm")
    return e.text() + f.text() + s.text(), dict(vgpr=208, sgpr=64, lds=163840, block=512, grid=256)
```

```python
from emit import *
from gen_k1 import *

def gen_k3(name):
    e = Emit()
    e.raw(f".p2align 8\n.globl {name}\n.type {name},@function\n{name}:")
    e.salu("s_cmp_ge_u32", "s2", 224)
    e.salu("s_cbranch_scc1", "K3_END")
    e.raw("    s_load_dwordx2 s[4:5], s[0:1], 0")
    e.raw("    s_load_dwordx2 s[6:7], s[0:1], 16")
    e.raw("    s_load_dwordx2 s[8:9], s[0:1], 56")
    e.raw("    s_load_dwordx2 s[12:13], s[0:1], 72")
    e.salu("s_and_b32", "s30", "s2", 7)
    e.salu("s_lshr_b32", "s31", "s2", 3)
    e.salu("s_mul_i32", "s32", "s31", 37)
    e.salu("s_lshr_b32", "s32", "s32", 8)
    e.salu("s_mul_i32", "s3", "s32", 7)
    e.salu("s_sub_u32", "s33", "s31", "s3")
    e.salu("s_lshl_b32", "s3", "s30", 2)
    e.salu("s_add_u32", "s32", "s32", "s3")
    e.valu("v_lshrrev_b32", "v1", "6", "v0")
    e.valu("v_mov_b32", "v12", "v0")
    e.valu("v_and_b32", "v0", "63", "v0")
    e.valu("v_readfirstlane_b32", "s34", "v1")
    e.valu("v_lshlrev_b32", "v1", "4", "v0")
    e.salu("s_lshr_b32", "s35", "s34", 1)
    e.salu("s_and_b32", "s36", "s34", 1)
    e.salu("s_lshl_b32", "s40", "s34", 10)
    e.salu("s_lshl_b32", "s37", "s32", 16)
    e.salu("s_add_u32", "s37", "s37", "s40")
    e.salu("s_add_u32", "s37", "s37", hex(WS_O))
    e.salu("s_mul_i32", "s38", "s34", 8 * 896)
    e.salu("s_lshl_b32", "s3", "s33", 7)
    e.salu("s_add_u32", "s38", "s38", "s3")
    e.valu("v_lshrrev_b32", "v4", "3", "v0")
    e.valu("v_and_b32", "v5", "7", "v0")
    e.valu("v_lshrrev_b32", "v6", "2", "v0")
    e.valu("v_and_b32", "v6", "4", "v6")
    e.valu("v_xor_b32", "v6", "v6", "v5")
    e.valu("v_mul_u32_u24", "v2", "896", "v4")
    e.valu("v_lshl_add_u32", "v2", "v6", "4", "v2")
    e.raw("    s_waitcnt lgkmcnt(0)")
    e.pos += 4
    srd(e, 16, 12, WS_SIZE)
    srd(e, 20, 6, 401408)
    WOFF = 65536
    for i in range(16):
        e.salu("s_add_u32", "m0", "s40", i * 4096)
        e.dma(1, 16, "s37")
        e.salu("s_add_u32", "s37", "s37", 4096)
        if i < 15:
            e.salu("s_add_u32", "m0", "s40", WOFF + i * 4096)
            e.dma(2, 20, "s38")
            e.salu("s_add_u32", "s38", "s38", 32 * 896)
    ACC, P1, XR, OF, WF = 16, 32, 48, 56, 72
    e.salu("s_lshl_b32", "s41", "s32", 1)
    e.salu("s_add_u32", "s41", "s41", "s35")
    e.salu("s_mul_i32", "s41", "s41", 14)
    e.salu("s_lshl_b32", "s3", "s33", 1)
    e.salu("s_add_u32", "s41", "s41", "s3")
    e.salu("s_add_u32", "s41", "s41", "s36")
    e.salu("s_lshl_b32", "s41", "s41", 12)
    e.salu("s_add_u32", "s41", "s41", hex(WS_P))
    e.salu("s_add_u32", "s42", "s41", 64 * 14 * 4096)
    ndma = len(e.vm)
    for i in range(4):
        e.bload(ACC + 4 * i, 4, 1, 16, "s41", 1024 * i)
    for i in range(4):
        e.bload(P1 + 4 * i, 4, 1, 16, "s42", 1024 * i)
    srd(e, 24, 4, 1835008)
    srd(e, 28, 8, 1835008)
    e.valu("v_lshrrev_b32", "v13", "3", "v12")
    e.valu("v_mul_u32_u24", "v3", "896", "v13")
    e.valu("v_lshl_add_u32", "v3", "v5", "4", "v3")
    e.salu("s_mul_i32", "s43", "s32", 64 * 896)
    e.salu("s_lshl_b32", "s3", "s33", 7)
    e.salu("s_add_u32", "s43", "s43", "s3")
    e.salu("s_add_u32", "s44", "s43", 32 * 896)
    e.bload(XR, 4, 3, 24, "s43")
    e.bload(XR + 4, 4, 3, 24, "s44")
    e.salu("s_lshl_b32", "s45", "s35", 15)
    e.valu("v_add_u32", "v7", "s45", "v1")
    e.valu("v_lshrrev_b32", "v8", "5", "v0")
    e.valu("v_bfe_u32", "v9", "v0", "2", "2")
    e.valu("v_lshl_add_u32", "v9", "v8", "2", "v9")
    e.valu("v_lshlrev_b32", "v9", "7", "v9")
    e.valu("v_and_b32", "v10", "16", "v0")
    e.valu("v_lshlrev_b32", "v10", "1", "v10")
    e.valu("v_and_b32", "v11", "3", "v0")
    e.valu("v_lshl_add_u32", "v10", "v11", "3", "v10")
    e.valu("v_and_b32", "v11", "8", "v0")
    e.valu("v_lshlrev_b32", "v11", "3", "v11")
    e.valu("v_xor_b32", "v10", "v10", "v11")
    e.salu("s_lshl_b32", "s45", "s36", 6)
    e.valu("v_xor_b32", "v10", "s45", "v10")
    e.salu("s_mov_b32", "s45", WOFF)
    e.valu("v_add3_u32", "v9", "v10", "v9", "s45")
    e.wait(vm=len(e.vm) - ndma)
    e.barrier()

    def rd(k):
        h, a = k >> 1, k & 1
        e.ds_read("ds_read_b128", OF + 4 * (k & 3), 4, 7, k * 1024)
        off = (28 * h + 16 * a) * 128
        e.ds_read("ds_read_b64_tr_b16", WF + 4 * (k & 3), 2, 9, off)
        e.ds_read("ds_read_b64_tr_b16", WF + 4 * (k & 3) + 2, 2, 9, off + 1024)

    for k in range(3):
        rd(k)
    for k in range(32):
        e.mfma(ACC, WF + 4 * (k & 3), OF + 4 * (k & 3))
        if k + 3 < 32:
            rd(k + 3)
    TB = WOFF + 61440
    e.valu("v_and_b32", "v10", "31", "v0")
    e.valu("v_mul_u32_u24", "v10", "272", "v10")
    e.valu("v_lshl_add_u32", "v10", "v8", "4", "v10")
    e.salu("s_mul_i32", "s45", "s35", 32 * 272)
    e.salu("s_lshl_b32", "s3", "s36", 7)
    e.salu("s_add_u32", "s45", "s45", "s3")
    e.salu("s_add_u32", "s45", "s45", TB)
    e.valu("v_add_u32", "v10", "s45", "v10")
    e.valu("v_mul_u32_u24", "v11", "272", "v13")
    e.valu("v_lshl_add_u32", "v11", "v5", "5", "v11")
    e.valu("v_add_u32", "v11", hex(TB), "v11")
    for i in range(4):
        for j in range(4):
            e.valu("v_add_f32", vr(ACC + 4 * i + j), vr(ACC + 4 * i + j), vr(P1 + 4 * i + j))
        e.ds_write("ds_write_b128", 10, ACC + 4 * i, 4, 32 * i)
    e.wait(lgkm=0)
    e.barrier()
    for p in range(2):
        e.ds_read("ds_read_b128", P1 + 8 * p, 4, 11, p * 32 * 272)
        e.ds_read("ds_read_b128", P1 + 8 * p + 4, 4, 11, p * 32 * 272 + 16)
    for p in range(2):
        for i in range(4):
            e.valu("v_lshlrev_b32", vr(OF + 2 * i), "16", vr(XR + 4 * p + i))
            e.valu("v_and_b32", vr(OF + 2 * i + 1), "0xffff0000", vr(XR + 4 * p + i))
        for i in range(8):
            e.valu("v_add_f32", vr(OF + i), vr(OF + i), vr(P1 + 8 * p + i))
        for i in range(4):
            e.valu("v_cvt_pk_bf16_f32", vr(WF + 4 * p + i), vr(OF + 2 * i), vr(OF + 2 * i + 1))
        e.bstore(WF + 4 * p, 4, 3, 28, "s43" if p == 0 else "s44")
    e.label("K3_END")
    e.salu("s_endpgm")
    return e.text(), dict(vgpr=88, sgpr=64, lds=TB + 64 * 272, block=256, grid=224)
```

```python
import sys
from gen_k1 import gen_k1
from gen_k2 import gen_k2
from gen_k3 import gen_k3
HEAD = open('parallel_sum__mha_block__geglu_ffn__prompt.s.ref').read().split("; Override")[0]
def build(kernels):
    out = HEAD
    for name, (txt, m) in kernels:
        out += f"; @launch kernel={name} grid=({m['grid']},1,1) block=({m['block']},1,1) lds={m['lds']}\n"
    out += '.amdgcn_target "amdgcn-amd-amdhsa--gfx950"\n.text\n'
    for name, (txt, m) in kernels:
        out += txt
    out += '.section .rodata,"a"\n'
    for name, (txt, m) in kernels:
        out += f""".p2align 6
.amdhsa_kernel {name}
  .amdhsa_next_free_vgpr {m['vgpr']}
  .amdhsa_next_free_sgpr {m['sgpr']}
  .amdhsa_accum_offset {(m['vgpr']+3)//4*4}
  .amdhsa_group_segment_fixed_size 0
  .amdhsa_kernarg_size 80
  .amdhsa_user_sgpr_count 2
  .amdhsa_user_sgpr_kernarg_segment_ptr 1
  .amdhsa_system_sgpr_workgroup_id_x 1
.end_amdhsa_kernel
"""
    return out
if __name__ == "__main__":
    ks = [("proj_kernel", gen_k1("proj_kernel")), ("attn_kernel", gen_k2("attn_kernel")), ("outp_kernel", gen_k3("outp_kernel"))]
    path = sys.argv[1] if len(sys.argv) > 1 else 'parallel_sum__mha_block__geglu_ffn__prompt.s'
    open(path, 'w').write(build(ks))
```

```python
import re

TRANS = ("v_exp_f32", "v_log_f32", "v_rcp_f32", "v_rsq_f32", "v_sqrt_f32", "v_sin_f32", "v_cos_f32")


def vr(a, n=1):
    return f"v{a}" if n == 1 else f"v[{a}:{a + n - 1}]"


def sr(a, n=1):
    return f"s{a}" if n == 1 else f"s[{a}:{a + n - 1}]"


_REG = re.compile(r"\b([vs])(?:(\d+)|\[(\d+):(\d+)\])")


def regs_of(op):
    out = []
    for m in _REG.finditer(op):
        k = m.group(1)
        if m.group(2) is not None:
            out.append((k, int(m.group(2))))
        else:
            out += [(k, i) for i in range(int(m.group(3)), int(m.group(4)) + 1)]
    for name in ("vcc", "exec", "m0"):
        if re.search(r"\b" + name + r"\b", op):
            out.append(("x", name))
    return out


class Emit:
    def __init__(self):
        self.lines = []
        self.pos = 0
        self.lgkm = []
        self.vm = []
        self.last = {}
        self.cread = {}
        self.stdata = {}
        self.nops = 0
        self.stats = {}

    def raw(self, s):
        self.lines.append(s)

    def comment(self, s):
        self.lines.append("    ; " + s)

    def label(self, name):
        self.lines.append(name + ":")

    def _put(self, text, states=1):
        self.lines.append("    " + text)
        self.pos += states
        k = text.split()[0]
        self.stats[k] = self.stats.get(k, 0) + 1

    def nop(self, n):
        while n > 0:
            k = min(n, 16)
            self._put(f"s_nop {k - 1}", k)
            self.nops += 1
            n -= k

    def _need(self, prod_pos, states):
        have = self.pos - prod_pos - 1
        if have < states:
            self.nop(states - have)

    def wait(self, vm=None, lgkm=None):
        parts = []
        if vm is not None and vm < len(self.vm):
            assert vm <= 63
            parts.append(f"vmcnt({vm})")
            self.vm = self.vm[len(self.vm) - vm:] if vm else []
        if lgkm is not None and lgkm < len(self.lgkm):
            lgkm = min(lgkm, 15)
            parts.append(f"lgkmcnt({lgkm})")
            self.lgkm = self.lgkm[len(self.lgkm) - lgkm:] if lgkm else []
        if parts:
            self._put("s_waitcnt " + " ".join(parts))

    def wait_force(self, text):
        self._put("s_waitcnt " + text)
        if "vmcnt(0)" in text:
            self.vm = []
        if "lgkmcnt(0)" in text:
            self.lgkm = []

    def wait_regs(self, regs):
        regs = set(regs)
        nv = nl = None
        for i, d in enumerate(self.vm):
            if d and d[0] & regs:
                nv = len(self.vm) - 1 - i
        for i, d in enumerate(self.lgkm):
            if d & regs:
                nl = len(self.lgkm) - 1 - i
        if nv is not None and nv > 63:
            nv = 63
        self.wait(nv, nl)

    def wait_v(self, a, n=1):
        self.wait_regs([("v", i) for i in range(a, a + n)])

    def wait_tag(self, tag):
        nv = None
        for i, d in enumerate(self.vm):
            if d[1] is not None and d[1] <= tag:
                nv = len(self.vm) - 1 - i
        self.wait(nv, None)

    def wait_tags(self, tags):
        nv = None
        for i, d in enumerate(self.vm):
            if d[1] is not None and d[1] in tags:
                nv = len(self.vm) - 1 - i
        self.wait(nv, None)

    def _haz(self, kind, op, rd, wr, srcc=None, dst=None):
        for r in rd + wr:
            l = self.last.get(r)
            if l is None:
                continue
            lk, lp, ex = l
            isread = r in rd
            if lk == "mfma":
                passes, dreg = ex
                big = {4: 8, 8: 12}[passes]
                if kind == "mfma":
                    if srcc is not None and r in srcc[0]:
                        if srcc[0] == dreg and srcc[1] == passes:
                            pass
                        else:
                            self._need(lp, big - 2)
                        if r in srcc[2]:
                            self._need(lp, big)
                    elif isread:
                        self._need(lp, big)
                    else:
                        self._need(lp, big - 2)
                else:
                    self._need(lp, big)
            elif lk in ("valu", "trans", "dot"):
                if r[0] == "v":
                    if kind == "mfma" and isread:
                        self._need(lp, 2)
                    if lk == "trans" and kind in ("valu", "dot", "mfma", "perm", "dpp") and isread:
                        self._need(lp, 1)
                    if kind in ("perm", "dpp") and isread:
                        self._need(lp, 2)
                    if kind == "rdlane" and isread:
                        self._need(lp, 1)
                    if lk == "dot":
                        if not (kind == "dot" and ex == op and srcc is not None and r in srcc):
                            self._need(lp, 3)
                else:
                    if kind in ("valu", "trans", "dot", "perm", "dpp", "mfma") and isread:
                        self._need(lp, 2)
                    if kind == "rdlane" and isread:
                        self._need(lp, 4)
                    if kind in ("vmem", "ds") and isread:
                        self._need(lp, 5)
                    if kind == "salu" and isread:
                        self._need(lp, 1)
            elif lk == "salu":
                if r == ("x", "m0") and kind in ("vmem", "ds"):
                    self._need(lp, 1)
        if kind in ("valu", "trans", "dot", "perm", "dpp", "rdlane"):
            for r in wr:
                if r in self.cread:
                    self._need(self.cread[r], 7)
                if r in self.stdata:
                    self._need(self.stdata[r], 2)
        elif kind in ("vmem", "ds", "mfma"):
            for r in wr:
                if r in self.stdata:
                    self._need(self.stdata[r], 1)

    def _wrote(self, kind, wr, ex=None):
        for r in wr:
            self.last[r] = (kind, self.pos - 1, ex)

    def valu(self, op, *ops, mods="", rmw=False, ndst=1):
        wr = sum((regs_of(o) for o in ops[:ndst]), [])
        rd = sum((regs_of(o) for o in ops[ndst:]), [])
        base = op.replace("_e32", "").replace("_e64", "").replace("_dpp", "")
        if rmw or base in ("v_fmac_f32", "v_dot2c_f32_bf16"):
            rd = rd + wr
        kind = "valu"
        if base in TRANS:
            kind = "trans"
        if base.startswith("v_dot2"):
            kind = "dot"
        hk = kind
        if "quad_perm" in mods or "row_" in mods:
            hk = "dpp"
        if base.startswith("v_permlane"):
            hk = "perm"
            rd = rd + wr
            wr = list(rd)
        if base in ("v_readfirstlane_b32", "v_readlane_b32"):
            hk = "rdlane"
        if base.startswith("v_cndmask") and len(ops) == 3:
            rd = rd + [("x", "vcc")]
        self.wait_regs(rd + wr)
        srcc = None
        if kind == "dot":
            srcc = regs_of(ops[3]) if len(ops) > 3 else wr
        self._haz(hk, base, rd, wr, srcc=srcc)
        self._put(f"{op} " + ", ".join(ops) + (" " + mods if mods else ""))
        self._wrote(kind, wr, base if kind == "dot" else None)

    def salu(self, op, *ops, ndst=1):
        if op.startswith("s_cmp") or op.startswith("s_setprio") or op.startswith("s_cbranch") or op in ("s_branch", "s_barrier", "s_endpgm", "s_sleep"):
            ndst = 0
        wr = sum((regs_of(str(o)) for o in ops[:ndst]), [])
        rd = sum((regs_of(str(o)) for o in ops[ndst:]), [])
        self._haz("salu", op, rd, wr)
        self._put(f"{op} " + ", ".join(str(o) for o in ops) if ops else op)
        self._wrote("salu", wr)

    def mfma(self, d, a, b, c=None, shape="32x32x16"):
        n, passes = (16, 8) if shape == "32x32x16" else (4, 4)
        D = [("v", i) for i in range(d, d + n)]
        A = [("v", i) for i in range(a, a + 4)]
        B = [("v", i) for i in range(b, b + 4)]
        if c is None:
            c = d
        if c == "0":
            C = []
            cs = "0"
        else:
            C = [("v", i) for i in range(c, c + n)]
            cs = vr(c, n)
        self.wait_regs(A + B + C + D)
        self._haz("mfma", "mfma", A + B + C, D, srcc=(C, passes, A + B))
        self._put(f"v_mfma_f32_{shape}_bf16 {vr(d, n)}, {vr(a, 4)}, {vr(b, 4)}, {cs}")
        self._wrote("mfma", D, (passes, D))
        if C and C != D:
            for r in C:
                self.cread[r] = self.pos - 1

    def ds_read(self, op, d, n, addr, off=0):
        assert 0 <= off < 65536, off
        D = [("v", i) for i in range(d, d + n)]
        rd = [("v", addr)]
        self.wait_regs(rd + D)
        self._haz("ds", op, rd, D)
        self._put(f"{op} {vr(d, n)}, v{addr}" + (f" offset:{off}" if off else ""))
        self.lgkm.append(set(D))
        for r in D:
            self.last.pop(r, None)

    def ds_write(self, op, addr, s, n, off=0):
        assert 0 <= off < 65536, off
        rd = [("v", addr)] + [("v", i) for i in range(s, s + n)]
        self.wait_regs(rd)
        self._haz("ds", op, rd, [])
        self._put(f"{op} v{addr}, {vr(s, n)}" + (f" offset:{off}" if off else ""))
        self.lgkm.append(set())

    def bload(self, d, n, voff, srd, soff="0", off=0, tag=None, flags=""):
        assert 0 <= off < 4096
        op = {1: "buffer_load_dword", 2: "buffer_load_dwordx2", 4: "buffer_load_dwordx4"}[n]
        D = [("v", i) for i in range(d, d + n)]
        rd = [("v", voff)] + regs_of(sr(srd, 4)) + regs_of(str(soff))
        self.wait_regs(rd + D)
        self._haz("vmem", op, rd, D)
        self._put(f"{op} {vr(d, n)}, v{voff}, {sr(srd, 4)}, {soff} offen" + (f" offset:{off}" if off else "") + (" " + flags if flags else ""))
        self.vm.append((set(D), tag))
        for r in D:
            self.last.pop(r, None)

    def dma(self, voff, srd, soff="0", off=0, tag=None, flags=""):
        assert 0 <= off < 4096
        rd = [("v", voff), ("x", "m0")] + regs_of(sr(srd, 4)) + regs_of(str(soff))
        self.wait_regs(rd)
        self._haz("vmem", "dma", rd, [])
        self._put(f"buffer_load_dwordx4 v{voff}, {sr(srd, 4)}, {soff} offen" + (f" offset:{off}" if off else "") + (" " + flags if flags else "") + " lds")
        self.vm.append((set(), tag))

    def bstore(self, s, n, voff, srd, soff="0", off=0, flags="", tag=None):
        assert 0 <= off < 4096
        op = {1: "buffer_store_dword", 2: "buffer_store_dwordx2", 4: "buffer_store_dwordx4"}[n]
        S = [("v", i) for i in range(s, s + n)]
        rd = [("v", voff)] + S + regs_of(sr(srd, 4)) + regs_of(str(soff))
        self.wait_regs(rd)
        self._haz("vmem", op, rd, [])
        self._put(f"{op} {vr(s, n)}, v{voff}, {sr(srd, 4)}, {soff} offen" + (f" offset:{off}" if off else "") + (" " + flags if flags else ""))
        self.vm.append((set(), tag))
        if n >= 3:
            for r in S:
                self.stdata[r] = self.pos - 1

    def barrier(self):
        self._put("s_barrier")

    STAMPS = False
    STV = 252

    def stamp(self, i, real=False):
        if not Emit.STAMPS:
            return
        assert i < 64
        self._put(f"{'s_memrealtime' if real else 's_memtime'} s[98:99]")
        self._put("s_waitcnt lgkmcnt(0)")
        self.lgkm = []
        self._put(f"v_writelane_b32 v{Emit.STV}, s98, {i}")

    def stamp_dump(self, srd_ws, base, wave_sreg, nwaves, vtmp, vlane):
        if not Emit.STAMPS:
            return
        self.salu("s_mul_i32", "s98", "s2", nwaves)
        self.salu("s_add_u32", "s98", "s98", sr(wave_sreg))
        self.salu("s_lshl_b32", "s98", "s98", 8)
        self.salu("s_add_u32", "s98", "s98", hex(base))
        self.valu("v_lshlrev_b32", vr(vtmp), "2", vr(vlane))
        self.bstore(Emit.STV, 1, vtmp, srd_ws, "s98", 0)

    def settle(self, n=16):
        self.nop(n)

    def fork(self):
        import copy
        e = Emit()
        e.pos = self.pos
        e.lgkm = copy.deepcopy(self.lgkm)
        e.vm = copy.deepcopy(self.vm)
        e.last = dict(self.last)
        e.cread = dict(self.cread)
        e.stdata = dict(self.stdata)
        return e

    def text(self):
        return "\n".join(self.lines) + "\n"
```

```python
import copy
import struct
import sys
from emit import *

WS_Q = 0x000000
WS_KV = 0x200000
WS_H = 0x600000
WS_O = 0xD00000
WS_FL = 0xF00000
FQK, FV, FH, FO = WS_FL, WS_FL + 1024, WS_FL + 2048, WS_FL + 4096
WS_ST = 0x1600000
WS_SIZE = 0x1800000
SC = "sc1"


def f2u(x):
    return struct.unpack("<I", struct.pack("<f", x))[0]


def hexf(x):
    return "0x%08x" % f2u(x)


S_X, S_WQ, S_W2, S_W3, S_WS, S_WD, S_WO, S_OUT, S_DBG = 24, 28, 32, 36, 40, 44, 48, 52, 56
(RB, C_, W_, G_, TT, W1K, O_QK, O_2, ST2, O_3, TILE, HEAD, QB, O_KV, O_WD, O_H, TB, CB, GQ, GTT, F2, KVB, QT,
 K1, K2, K3, A, B, D, E, SPIN) = [f"s{i}" for i in range(60, 91)]
HM = "s[92:93]"
M2 = "s[94:95]"

XF, ACCA, ACCB, WF, RV, ET, PK = 16, 128, 160, 192, 208, 224, 236
VPOLL, VJ = 253, 254
QF, OA, SS, PP, KV, GA, HF, NH = 208, 24, 40, 72, 80, 128, 160, 8
T2 = 16
OFFS = 64.0

P2, P3, TR0, TR1, AT = 28, 56, 84, 85, 86


def srd(e, d, base, nbytes):
    e.salu("s_mov_b32", sr(d), sr(base))
    e.salu("s_mov_b32", sr(d + 1), sr(base + 1))
    e.salu("s_mov_b32", sr(d + 2), hex(nbytes))
    e.salu("s_mov_b32", sr(d + 3), "0x20000")


class Ring:
    def __init__(self, G0):
        self.u = {}
        for n in range(7):
            self.u[("qk", n)] = [4 * n - 3, 4 * n]
        for n in range(14):
            self.u[("p2", n)] = [P2 + 2 * n - 1 if n else 26, P2 + 2 * n]
            self.u[("p3", n)] = [P3 + 2 * n - 1, P3 + 2 * n]
        for t in range(32):
            self.u[("kv", t)] = [max(TR1, AT + t - 2)] * 2
        for m in range(36):
            self.u[("w", m)] = [AT + m + G0 - 1] * 2
        self.slot = {}
        self.free = []
        self.busy = {}
        self.kv_ok = False
        self.early_w = 6

    def next(self, step):
        if not self.free:
            return None
        c = [k for k in self.u if k not in self.slot]
        if not self.kv_ok:
            c = [k for k in c if k[0] != "kv" and not (k[0] == "w" and k[1] >= self.early_w)]
        if not c:
            return None
        k = min(c, key=lambda k: (self.u[k][0], k[0] == "w", k[1]))
        s = self.free.pop(0)
        self.slot[k] = s
        self.busy[s] = self.u[k][1]
        return k

    def release(self, step):
        for s, l in sorted(self.busy.items(), key=lambda x: x[1]):
            if l < step:
                del self.busy[s]
                self.free.append(s)

    def needed(self, lim):
        ks = [k for k in self.u if self.u[k][0] < lim]
        for k in ks:
            assert k in self.slot, ("unit not issued in time", k, lim)
        return set(ks)

    def addr(self, k):
        return self.slot[k] * 8192


def gen(name, G0=9, bars1=(3, 10, 16, 26, 36, 48, 60, 72), barsA=(3, 8, 13, 17, 21, 25, 29), prio=True):
    e = Emit()
    R = Ring(G0)
    bars = list(bars1) + [TR1] + [AT + t for t in barsA] + [AT + 32]
    lab = [0]

    e.raw(f".p2align 8\n.globl {name}\n.type {name},@function\n{name}:")
    e.salu("s_cmp_ge_u32", "s2", 256)
    e.salu("s_cbranch_scc1", "L_END")
    e.stamp(0)
    e.stamp(1, real=True)
    e.raw("    s_load_dwordx16 s[4:19], s[0:1], 0")
    e.raw("    s_load_dwordx4 s[20:23], s[0:1], 64")
    e.salu("s_and_b32", A, "s2", 1)
    e.salu("s_lshl_b32", A, A, 3)
    e.salu("s_bfe_u32", RB, "s2", hex((3 << 16) | 3))
    e.salu("s_add_u32", RB, RB, A)
    e.salu("s_bfe_u32", C_, "s2", hex((2 << 16) | 1))
    e.salu("s_lshr_b32", A, "s2", 6)
    e.salu("s_lshl_b32", A, A, 2)
    e.salu("s_add_u32", C_, C_, A)
    e.valu("v_lshrrev_b32", "v1", "6", "v0")
    e.valu("v_and_b32", "v0", "63", "v0")
    e.valu("v_readfirstlane_b32", W_, "v1")
    e.valu("v_lshrrev_b32", "v4", "3", "v0")
    e.valu("v_and_b32", "v5", "7", "v0")
    e.valu("v_mul_u32_u24", "v2", "896", "v4")
    e.valu("v_lshl_add_u32", "v2", "v5", "4", "v2")
    e.salu("s_lshl_b32", A, RB, 3)
    e.salu("s_add_u32", A, A, W_)
    e.salu("s_mul_i32", A, A, 16 * 896)
    e.salu("s_add_u32", B, A, 8 * 896)
    e.raw("    s_waitcnt lgkmcnt(0)")
    e.pos += 4
    srd(e, S_X, 4, 1835008)
    XR = XF
    for rg in range(2):
        for c in range(7):
            e.bload(XR + 28 * rg + 4 * c, 4, 2, S_X, A if rg == 0 else B, 128 * c)
    e.salu("s_lshr_b32", G_, W_, 2)
    e.salu("s_and_b32", TT, W_, 3)
    e.salu("s_lshl_b32", W1K, W_, 10)
    srd(e, S_WQ, 6, 1204224)
    srd(e, S_WS, 22, WS_SIZE)
    srd(e, S_WD, 16, 1605632)
    srd(e, S_WO, 8, 401408)
    srd(e, S_OUT, 18, 1835008)
    srd(e, S_DBG, 20, 256)
    e.salu("s_bitcmp1_b32", W_, 1, ndst=0)
    e.salu("s_cselect_b32", sr(S_W3), "s14", "s12")
    e.salu("s_cselect_b32", sr(S_W3 + 1), "s15", "s13")
    e.salu("s_cselect_b32", D, 1, 0)
    e.salu("s_mov_b32", sr(S_W3 + 2), hex(1605632))
    e.salu("s_mov_b32", sr(S_W3 + 3), "0x20000")
    e.salu("s_mov_b32", sr(S_W2 + 3), "0x20000")
    e.salu("s_and_b32", A, W_, 1)
    e.salu("s_lshl_b32", B, G_, 1)
    e.salu("s_add_u32", A, A, B)
    e.salu("s_mul_i32", O_3, A, 8 * 3584)
    e.salu("s_lshl_b32", B, C_, 7)
    e.salu("s_add_u32", O_2, O_3, B)
    e.salu("s_add_u32", O_3, O_2, 12 * 128)
    e.salu("s_mul_i32", A, A, 8 * 2688)
    e.salu("s_mul_i32", B, C_, 224)
    e.salu("s_add_u32", A, A, B)
    e.salu("s_mul_i32", B, D, 112)
    e.salu("s_add_u32", A, A, B)
    e.salu("s_sub_u32", A, A, 224 * 12 - 1792)
    e.salu("s_cmp_ge_u32", C_, 12)
    e.salu("s_cselect_b32", O_2, A, O_2)
    e.salu("s_cselect_b32", sr(S_W2), "s6", sr(S_W3))
    e.salu("s_cselect_b32", sr(S_W2 + 1), "s7", sr(S_W3 + 1))
    e.salu("s_cselect_b32", sr(S_W2 + 2), hex(1204224), sr(S_W3 + 2))
    e.salu("s_movk_i32", E, 3584)
    e.salu("s_cselect_b32", E, 2688, E)
    e.salu("s_lshl_b32", ST2, E, 5)
    e.salu("s_mul_i32", O_QK, C_, 112)
    e.salu("s_mul_i32", A, W_, 8 * 2688)
    e.salu("s_add_u32", O_QK, O_QK, A)
    e.valu("v_lshrrev_b32", "v6", "2", "v0")
    e.valu("v_and_b32", "v6", "4", "v6")
    e.valu("v_xor_b32", "v6", "v6", "v5")
    e.valu("v_lshlrev_b32", "v6", "4", "v6")
    e.valu("v_mul_lo_u32", "v15", "v4", E)
    e.valu("v_add_u32", "v15", "v15", "v6")
    e.valu("v_mul_u32_u24", "v3", "2688", "v4")
    e.valu("v_add_u32", "v3", "v3", "v6")
    e.valu("v_mul_u32_u24", "v13", "3584", "v4")
    e.valu("v_add_u32", "v13", "v13", "v6")
    e.valu("v_mul_u32_u24", "v12", "896", "v4")
    e.valu("v_add_u32", "v12", "v12", "v6")
    e.valu("v_lshlrev_b32", "v1", "4", "v0")
    e.salu("s_and_b32", A, "s2", 7)
    e.salu("s_lshr_b32", B, "s2", 3)
    e.salu("s_lshl_b32", HEAD, A, 1)
    e.salu("s_lshr_b32", D, B, 4)
    e.salu("s_add_u32", HEAD, HEAD, D)
    e.salu("s_and_b32", QB, B, 15)
    e.salu("s_sub_u32", D, B, 4)
    e.salu("s_cmp_ge_u32", B, 28)
    e.salu("s_cselect_b32", B, D, B)
    e.salu("s_cselect_b32", sr(S_OUT + 2), 0, sr(S_OUT + 2))
    e.salu("s_mul_i32", TB, B, 37)
    e.salu("s_lshr_b32", TB, TB, 8)
    e.salu("s_mul_i32", D, TB, 7)
    e.salu("s_sub_u32", CB, B, D)
    e.salu("s_lshl_b32", A, A, 2)
    e.salu("s_add_u32", TB, TB, A)
    e.salu("s_lshr_b32", GQ, W_, 1)
    e.salu("s_and_b32", GTT, W_, 1)
    e.salu("s_lshl_b32", TILE, RB, 2)
    e.salu("s_add_u32", TILE, TILE, TT)
    e.salu("s_lshl_b32", QT, QB, 2)
    e.salu("s_add_u32", QT, QT, TT)
    e.salu("s_lshl_b32", KVB, HEAD, 18)
    e.salu("s_add_u32", KVB, KVB, hex(WS_KV))
    e.salu("s_add_u32", O_KV, KVB, W1K)
    e.salu("s_mul_i32", O_WD, GQ, 192 * 896)
    e.salu("s_mul_i32", A, GTT, 8 * 896)
    e.salu("s_add_u32", O_WD, O_WD, A)
    e.salu("s_lshl_b32", A, CB, 7)
    e.salu("s_add_u32", O_WD, O_WD, A)
    T = ACCA
    e.valu("v_mov_b32", vr(T), "0x7ffffff0")
    e.salu("s_lshl_b32", A, C_, 4)
    e.salu("s_add_u32", A, A, RB)
    e.salu("s_lshl_b32", A, A, 2)
    e.salu("s_add_u32", K1, A, hex(FQK))
    e.salu("s_add_u32", B, A, hex(FV - 12 * 64))
    e.salu("s_lshl_b32", A, RB, 5)
    e.salu("s_add_u32", A, A, C_)
    e.salu("s_lshl_b32", A, A, 2)
    e.salu("s_add_u32", K2, A, hex(FH))
    e.salu("s_add_u32", K3, K2, 48)
    e.salu("s_cmp_ge_u32", C_, 12)
    e.salu("s_cselect_b32", K2, B, K2)
    e.salu("s_lshl_b32", A, QB, 6)
    e.salu("s_add_u32", A, A, HEAD)
    e.salu("s_lshl_b32", A, A, 2)
    e.salu("s_add_u32", A, A, hex(FO))
    e.salu("s_cmp_lg_u32", W_, 0)
    e.salu("s_cbranch_scc1", "L_NOCLR")
    for i, s in enumerate((K1, K2, K3, A)):
        e.raw(f"    v_writelane_b32 v{T}, {s}, {i}")
    for i in range(3):
        e.salu("s_add_u32", A, A, 64)
        e.raw(f"    v_writelane_b32 v{T}, {A}, {4 + i}")
    e.label("L_NOCLR")
    e.valu("v_mov_b32", vr(T + 1), "0")
    e.bstore(T + 1, 1, T, S_WS, "0", 0, flags=SC, tag="clr")
    e.valu("v_or_b32", vr(T + 2), W_, "v0")
    e.valu("v_cmp_eq_u32", "vcc", "0", vr(T + 2))
    e.valu("v_mov_b32", vr(T + 2), "0x7ffffff0")
    e.valu("v_cndmask_b32", "v11", vr(T + 2), "0", "vcc")
    e.valu("v_cmp_lt_u32", HM, "31", "v0")

    def issue(e, R, step):
        k = R.next(step)
        if k is None:
            return False
        e.salu("s_add_u32", "m0", W1K, R.addr(k))
        if k[0] == "qk":
            e.dma(3, S_WQ, O_QK, tag=k)
            e.salu("s_add_u32", O_QK, O_QK, 64 * 2688)
        elif k[0] == "p2":
            e.dma(15, S_W2, O_2, tag=k)
            e.salu("s_add_u32", O_2, O_2, ST2)
        elif k[0] == "p3":
            e.dma(13, S_W3, O_3, tag=k)
            e.salu("s_add_u32", O_3, O_3, 32 * 3584)
        elif k[0] == "kv":
            e.dma(1, S_WS, O_KV, tag=k, flags=SC)
            e.salu("s_add_u32", O_KV, O_KV, 8192)
        else:
            m = k[1]
            e.dma(12, S_WD if m < 28 else S_WO, O_WD, tag=k)
            if m == 11:
                e.salu("s_mul_i32", A, GQ, 64 * 896)
                e.salu("s_add_u32", O_WD, O_WD, A)
                e.salu("s_add_u32", O_WD, O_WD, (16 + 768 - 192) * 896)
            elif m == 27:
                e.salu("s_mul_i32", A, GQ, (256 - 112) * 896)
                e.salu("s_sub_u32", O_WD, O_WD, A)
                e.salu("s_sub_u32", O_WD, O_WD, (768 + 240) * 896)
            elif m > 27:
                e.salu("s_add_u32", O_WD, O_WD, (16 if m % 2 == 0 else 12) * 896)
            else:
                e.salu("s_add_u32", O_WD, O_WD, 16 * 896)
        return True

    R.free = [14, 15, 16, 17, 18]
    RINV_LDS = 19 * 8192
    e.valu("v_xor_b32", "v7", "v4", "v5")
    e.valu("v_lshlrev_b32", "v7", "4", "v7")
    e.valu("v_lshl_add_u32", "v7", "v5", "9", "v7")
    e.salu("s_lshl_b32", A, GQ, 12)
    e.salu("s_lshl_b32", B, GTT, 8)
    e.salu("s_add_u32", A, A, B)
    e.valu("v_add_u32", "v7", A, "v7")
    e.valu("v_add_u32", "v8", "0x10000", "v7")
    e.salu("s_lshl_b32", A, W_, 6)
    e.salu("s_add_u32", A, A, RINV_LDS)
    e.valu("v_lshl_add_u32", "v14", "v4", "2", A)
    ONES, SEL0, SEL1 = "s96", "s97", "s91"
    e.salu("s_mov_b32", ONES, "0x3f803f80")
    e.salu("s_mov_b32", SEL0, "0x00003f80")
    e.salu("s_mov_b32", SEL1, "0x3f800000")
    e.stamp(2)
    dpp = ["quad_perm:[1,0,3,2] row_mask:0xf bank_mask:0xf", "quad_perm:[2,3,0,1] row_mask:0xf bank_mask:0xf",
           "row_half_mirror row_mask:0xf bank_mask:0xf"]

    def red8(regs):
        for m in dpp:
            for r in regs:
                e.valu("v_add_f32_dpp", vr(r), vr(r), vr(r), mods=m)

    T = ACCB
    for i in range(4):
        e.valu("v_mov_b32", vr(T + i), "0")
    for rg in range(2):
        Rg = XR + 28 * rg
        for i in range(28):
            e.valu("v_dot2c_f32_bf16", vr(T + rg), ONES, vr(Rg + i))
        if rg == 0:
            e.stamp(3)
            for _ in range(5):
                issue(e, R, -1)
            e.salu("s_and_b32", A, RB, 7)
            e.salu("s_lshl_b32", A, A, 2)
            e.salu("s_and_b32", B, W_, 1)
            e.salu("s_lshl_b32", D, G_, 1)
            e.salu("s_add_u32", B, B, D)
            e.salu("s_add_u32", A, A, B)
            e.salu("s_mul_i32", A, A, 14)
            e.salu("s_lshl_b32", B, B, 3)
            e.salu("s_sub_u32", A, A, B)
            e.valu("v_lshrrev_b32", vr(T + 8), "1", "v0")
            e.valu("v_min_u32", vr(T + 8), "13", vr(T + 8))
            e.valu("v_add_u32", vr(T + 8), A, vr(T + 8))
            e.valu("v_and_b32", vr(T + 9), "1", "v0")
            e.valu("v_mul_u32_u24", vr(T + 9), "112", vr(T + 9))
            e.valu("v_mad_u32_u24", vr(T + 10), vr(T + 8), E, vr(T + 9))
            e.valu("v_mul_u32_u24", vr(T + 11), "3584", vr(T + 8))
            e.bload(VJ, 1, T + 10, S_W2, O_2)
            e.bload(VJ + 1, 1, T + 11, S_W3, O_3)
        red8([T + rg])
        e.valu("v_mul_f32", vr(T + rg), hexf(1.0 / 448), vr(T + rg))
        e.valu("v_cvt_pk_bf16_f32", vr(T + 6), vr(T + rg), vr(T + rg))
        e.valu("v_and_b32", vr(T + 6), "0xffff0000", vr(T + 6))
        e.valu("v_sub_f32", vr(T + rg), vr(T + rg), vr(T + 6))
        e.valu("v_xor_b32", vr(T + 6), "0x80000000", vr(T + 6))
        for c in range(7):
            Dd = T + 8 + 8 * (c & 1)
            for i in range(4):
                e.valu("v_dot2_f32_bf16", vr(Dd + 2 * i), vr(Rg + 4 * c + i), SEL0, vr(T + 6))
                e.valu("v_dot2_f32_bf16", vr(Dd + 2 * i + 1), vr(Rg + 4 * c + i), SEL1, vr(T + 6))
            if c > 0:
                for i in range(4):
                    e.valu("v_dot2c_f32_bf16", vr(T + 2 + rg), vr(Rg + 4 * c - 4 + i), vr(Rg + 4 * c - 4 + i))
            for i in range(4):
                e.valu("v_cvt_pk_bf16_f32", vr(Rg + 4 * c + i), vr(Dd + 2 * i), vr(Dd + 2 * i + 1))
            e.ds_write("ds_write_b128", 7 + (c >> 2), Rg + 4 * c, 4, rg * 128 + (c & 3) * 16384)
        for i in range(4):
            e.valu("v_dot2c_f32_bf16", vr(T + 2 + rg), vr(Rg + 24 + i), vr(Rg + 24 + i))
    red8([T + 2, T + 3])
    for rg in range(2):
        e.valu("v_mul_f32", vr(T + rg), vr(T + rg), vr(T + rg))
    e.salu("s_mov_b32", A, hexf(1.0 / 448))
    for rg in range(2):
        e.valu("v_fma_f32", vr(T + rg), vr(T + 2 + rg), A, "-" + vr(T + rg))

    def rnd2():
        e.valu("v_cvt_pk_bf16_f32", vr(T + 2), vr(T), vr(T + 1))
        e.valu("v_lshlrev_b32", vr(T), "16", vr(T + 2))
        e.valu("v_and_b32", vr(T + 1), "0xffff0000", vr(T + 2))

    rnd2()
    e.valu("v_add_f32", vr(T), hexf(1e-5), vr(T))
    e.valu("v_add_f32", vr(T + 1), hexf(1e-5), vr(T + 1))
    rnd2()
    e.valu("v_sqrt_f32", vr(T), vr(T))
    e.valu("v_sqrt_f32", vr(T + 1), vr(T + 1))
    rnd2()
    e.valu("v_rcp_f32", vr(T), vr(T))
    e.valu("v_rcp_f32", vr(T + 1), vr(T + 1))
    e.nop(1)
    e.ds_write("ds_write_b32", 14, T, 1, 0)
    e.ds_write("ds_write_b32", 14, T + 1, 1, 32)
    e.wait_tags({"clr"})
    e.valu("v_mov_b32", vr(T + 4), "1")
    e._put(f"buffer_atomic_add v{T + 4}, v11, {sr(S_DBG, 4)}, 0 offen")
    e.vm.append((set(), None))
    XA = PK
    e.valu("v_lshrrev_b32", vr(T + 8), "5", "v0")
    e.valu("v_and_b32", vr(T + 9), "31", "v0")
    e.salu("s_lshl_b32", A, TT, 12)
    e.valu("v_lshl_add_u32", vr(T + 10), vr(T + 8), "9", A)
    e.valu("v_xor_b32", vr(T + 11), vr(T + 9), vr(T + 8))
    for j in range(4):
        e.valu("v_xor_b32", vr(T + 12), str(2 * j), vr(T + 11))
        e.valu("v_lshl_add_u32", vr(XA + j), vr(T + 12), "4", vr(T + 10))
        e.valu("v_add_u32", vr(XA + 4 + j), "0x10000", vr(XA + j))
    e.valu("v_bfe_u32", "v9", "v0", "2", "2")
    e.valu("v_lshl_add_u32", "v9", vr(T + 8), "3", "v9")
    e.valu("v_lshlrev_b32", "v9", "7", "v9")
    e.valu("v_and_b32", "v10", "16", "v0")
    e.valu("v_lshlrev_b32", "v10", "1", "v10")
    e.valu("v_and_b32", "v2", "3", "v0")
    e.valu("v_lshl_add_u32", "v10", "v2", "3", "v10")
    e.valu("v_and_b32", "v2", "8", "v0")
    e.valu("v_lshlrev_b32", "v2", "3", "v2")

    def tr_addr(e, d, toff, add, rows="v9"):
        e.valu("v_add_u32", vr(d), toff, "v10")
        e.valu("v_xor_b32", vr(d), vr(d), "v2")
        e.valu("v_add3_u32", vr(d), vr(d), rows, add)
        e.valu("v_add_u32", vr(d + 1), "0x10000", vr(d))
        e.valu("v_add_u32", vr(d + 2), "0x20000", vr(d))

    TA0, TA1 = 4, PK + 8
    e.salu("s_mul_i32", A, G_, 56)
    tr_addr(e, TA0, A, "0")
    e.salu("s_lshl_b32", A, TT, 7)
    e.salu("s_add_u32", A, A, RINV_LDS)
    e.valu("v_lshl_add_u32", vr(T + 12), vr(T + 9), "2", A)
    e.valu("v_lshl_add_u32", vr(T + 13), vr(T + 8), "4", A)
    e.stamp(4)
    e.wait_tags(R.needed(bars[0]))
    e.wait(lgkm=0)
    e.barrier()
    e.stamp(5)
    for c in range(7):
        last = 2 if c < 2 else 9
        R.busy[2 * c] = last
        R.busy[2 * c + 1] = last
    R.busy[19] = 2

    def tr_frag(e, dst, a3, byte, second=512):
        seg, off = byte >> 16, byte & 0xffff
        e.ds_read("ds_read_b64_tr_b16", dst, 2, a3 + seg, off)
        e.ds_read("ds_read_b64_tr_b16", dst + 2, 2, a3 + seg, off + second)

    def xf_read(e, j):
        byte = (j >> 2) * 16384 + (j & 3) * 1024
        e.ds_read("ds_read_b128", XF + 4 * j, 4, XA + (j & 3) + 4 * (byte >> 16), byte & 0xffff)

    def qk_frag(e, j):
        tr_frag(e, WF + 4 * (j & 3), TA0, R.addr(("qk", j // 4)) + (j & 3) * 2048)

    def sync(e, R, step, drain=(), publish=()):
        nxt = [b for b in bars if b > step]
        e.wait_tags(R.needed(nxt[0] if nxt else 999) | set(drain))
        e.wait(lgkm=0)
        e.barrier()
        e.stamp(6 + bars.index(step))
        R.release(step)
        for s in publish:
            e.valu("v_mov_b32", vr(VPOLL - 2), "1")
            e.bstore(VPOLL - 2, 1, 11, S_WS, s, 0, flags=SC)

    def poll_issue(e, voff, srd_, soff):
        e.bload(VPOLL, 1, voff, srd_, soff, flags=SC)

    def poll_check(e, voff, srd_, soff, val):
        lab[0] += 1
        n = lab[0]
        e.valu("v_cmp_ne_u32", "vcc", val, vr(VPOLL))
        e.nop(1)
        e.salu("s_cbranch_vccz", f"L_OK{n}")
        e.salu("s_mov_b32", SPIN, 200000)
        e.label(f"L_SP{n}")
        e.raw("    s_sleep 2")
        e.raw(f"    buffer_load_dword v{VPOLL}, v{voff}, {sr(srd_, 4)}, {soff} offen {SC}")
        e.raw(f"    s_sub_u32 {SPIN}, {SPIN}, 1")
        e.raw(f"    s_cbranch_scc1 L_OK{n}")
        e.raw("    s_waitcnt vmcnt(0)")
        e.raw(f"    v_cmp_ne_u32 vcc, {val}, v{VPOLL}")
        e.raw("    s_nop 1")
        e.raw(f"    s_cbranch_vccnz L_SP{n}")
        e.label(f"L_OK{n}")

    e.ds_read("ds_read_b32", 14, 1, T + 12)
    xf_read(e, 0)
    qk_frag(e, 0)
    xf_read(e, 1)
    qk_frag(e, 1)
    xf_read(e, 2)
    qk_frag(e, 2)
    for i in range(4):
        e.ds_read("ds_read_b128", RV + 4 * i, 4, T + 13, 32 * i)
    xn = 3
    for j in range(26):
        if j in bars:
            sync(e, R, j)
        e.mfma(ACCB, WF + 4 * (j & 3), XF + 4 * j, "0" if j == 0 else None)
        if j + 3 < 28:
            qk_frag(e, j + 3)
        for _ in range(2 if j < 3 else 3):
            if xn < 28:
                xf_read(e, xn)
                xn += 1
        if j == 2:
            assert xn >= 8
        if j == 9:
            assert xn == 28
        if j >= 3 and j % 2 == 1:
            issue(e, R, j)
    e.salu("s_cmp_ge_u32", C_, 12)
    e.salu("s_cbranch_scc1", "L_VTYPE")

    def geglu_queue(e, ACC, fwreg_add, first):
        q = []
        c1 = 2.0 * 0.7978845608028654 * 1.4426950408889634
        A1, A2, KK = ET + 8, ET + 9, ET + 10
        if first:
            q.append(lambda: e.valu("v_mul_f32", vr(KK), "v14", "v14"))
            q.append(lambda: e.valu("v_mul_f32", vr(A1), hexf(-c1), "v14"))
            q.append(lambda: e.valu("v_mul_f32", vr(A2), hexf(0.044715), vr(KK)))
            q.append(lambda: e.valu("v_rcp_f32", vr(KK), vr(KK)))
            q.append(lambda: e.valu("v_mul_f32", vr(A2), vr(A2), vr(A1)))
        if ACC is None:
            return q
        q.append(lambda: e.salu("s_mul_i32", F2, TILE, 56))
        q.append(lambda: e.salu("s_lshl_b32", B, C_, 1))
        q.append(lambda: e.salu("s_add_u32", F2, F2, B))
        q.append(lambda: e.salu("s_add_u32", F2, F2, G_))
        q.append(lambda: e.salu("s_lshl_b32", F2, F2, 11))
        q.append(lambda: e.salu("s_add_u32", F2, F2, hex(WS_H + fwreg_add * 4096)))
        for a in range(2):
            for hh in range(2):
                G = ACC + 8 * a + 4 * hh
                U = ACC + 16 + 8 * a + 4 * hh
                t = ET + 4 * hh
                P = PK + 4 * a
                for i in range(4):
                    q.append(lambda i=i, G=G, t=t: e.valu("v_mul_f32", vr(t + i), vr(G + i), vr(G + i)))
                for i in range(4):
                    q.append(lambda i=i, t=t: e.valu("v_fma_f32", vr(t + i), vr(t + i), vr(A2), vr(A1)))
                for i in range(4):
                    q.append(lambda i=i, G=G, t=t: e.valu("v_mul_f32", vr(t + i), vr(t + i), vr(G + i)))
                for i in range(4):
                    q.append(lambda i=i, t=t: e.valu("v_exp_f32", vr(t + i), vr(t + i)))
                for i in range(4):
                    q.append(lambda i=i, G=G, U=U: e.valu("v_mul_f32", vr(G + i), vr(G + i), vr(U + i)))
                for i in range(4):
                    q.append(lambda i=i, t=t: e.valu("v_fma_f32", vr(t + i), vr(t + i), vr(KK), vr(KK)))
                for i in range(4):
                    q.append(lambda i=i, t=t: e.valu("v_rcp_f32", vr(t + i), vr(t + i)))
                for i in range(4):
                    q.append(lambda i=i, G=G, t=t: e.valu("v_mul_f32", vr(G + i), vr(G + i), vr(t + i)))
                for i in range(2):
                    q.append(lambda i=i, G=G, P=P, hh=hh: e.valu("v_cvt_pk_bf16_f32", vr(P + 2 * hh + i), vr(G + 2 * i), vr(G + 2 * i + 1)))
            q.append(lambda P=P, a=a: e.bstore(P, 4, 1, S_WS, F2, a * 1024, flags=SC, tag="st%d" % fwreg_add))
        return q

    def qk_queue(e):
        q = []
        s = lambda *a: q.append(lambda: e.salu(*a))
        v = lambda *a: q.append(lambda: e.valu(*a))
        s("s_lshl_b32", D, C_, 1)
        s("s_add_u32", D, D, G_)
        s("s_and_b32", B, D, 15)
        s("s_lshl_b32", B, B, 6)
        s("s_add_u32", B, B, TILE)
        s("s_lshl_b32", F2, B, 11)
        s("s_lshl_b32", B, B, 12)
        s("s_add_u32", B, B, hex(WS_KV))

        def sel():
            e.salu("s_cmp_ge_u32", D, 16)
            e.salu("s_cselect_b32", F2, B, F2)
            e.salu("s_cselect_b32", B, "1.0", hexf(28 ** -0.5 * 1.4426950408889634))
            e.salu("s_cselect_b32", D, "1.0", "0")
        q.append(sel)
        v("v_mul_f32", vr(ET), B, "v14")
        v("v_mov_b32", vr(ET + 2), D)
        v("v_cndmask_b32", vr(ET + 1), vr(ET), "0", HM)
        v("v_cndmask_b32", vr(ET + 2), "0", vr(ET + 2), HM)
        for i in range(12):
            v("v_mul_f32", vr(ACCB + i), vr(ACCB + i), vr(ET))
        v("v_fma_f32", vr(ACCB + 12), vr(ACCB + 12), vr(ET + 1), vr(ET + 2))
        for i in range(13, 16):
            v("v_mul_f32", vr(ACCB + i), vr(ACCB + i), vr(ET + 1))
        for i in range(8):
            v("v_cvt_pk_bf16_f32", vr(PK + i), vr(ACCB + 2 * i), vr(ACCB + 2 * i + 1))
        q.append(lambda: e.bstore(PK, 4, 1, S_WS, F2, 0, flags=SC, tag="stqk"))
        q.append(lambda: e.bstore(PK + 4, 4, 1, S_WS, F2, 1024, flags=SC, tag="stqk"))
        return q

    def v_queue(e):
        q = []
        s = lambda *a: q.append(lambda: e.salu(*a))
        v = lambda *a: q.append(lambda: e.valu(*a))
        M, ONE = ET, ET + 1
        v("v_and_b32", vr(ONE), "31", "v0")
        v("v_cmp_gt_u32", "vcc", "28", vr(ONE))
        v("v_cndmask_b32", vr(M), "0", "1.0", "vcc")
        v("v_cmp_eq_u32", "vcc", "28", vr(ONE))
        v("v_cndmask_b32", vr(ONE), "0", "1.0", "vcc")
        for i in range(16):
            v("v_mul_f32", vr(RV + i), vr(RV + i), vr(M))
        s("s_lshl_b32", F2, C_, 1)
        s("s_add_u32", F2, F2, G_)
        s("s_sub_u32", F2, F2, 24)
        s("s_lshl_b32", F2, F2, 7)
        s("s_add_u32", F2, F2, TILE)
        s("s_lshl_b32", F2, F2, 12)
        s("s_add_u32", F2, F2, hex(WS_KV))
        for t in range(2):
            for a in range(2):
                G = ACCA + 16 * t + 8 * a
                P = PK + 4 * (2 * t + a)
                for i in range(8):
                    v("v_fma_f32", vr(G + i), vr(G + i), vr(RV + 8 * a + i), vr(ONE))
                for i in range(4):
                    v("v_cvt_pk_bf16_f32", vr(P + i), vr(G + 2 * i), vr(G + 2 * i + 1))
                q.append(lambda P=P, a=a: e.bstore(P, 4, 1, S_WS, F2, 2048 + a * 1024, flags=SC, tag="st0"))
            s("s_add_u32", F2, F2, 64 * 4096)
        return q

    def mid(e, R, vtype):
        def frag(p, j, i):
            base = R.addr(("p2" if p == 2 else "p3", j // 2)) + (j & 1) * 4096
            if vtype and p == 2:
                tr_frag(e, WF + 8 * (j & 1) + 4 * i, TA1 if i else TA0, base)
            else:
                tr_frag(e, WF + 8 * (j & 1) + 4 * i, TA0, base + 2048 * i)

        if vtype:
            e.salu("s_lshl_b32", A, G_, 11)
            tr_addr(e, TA0, "0", A)
            tr_addr(e, TA1, "56", A)
        else:
            e.salu("s_lshl_b32", A, G_, 6)
            tr_addr(e, TA0, A, "0")
        for j in (26, 27):
            if j in bars:
                sync(e, R, j)
            e.mfma(ACCB, WF + 4 * (j & 3), XF + 4 * j)
            frag(2, 0, j - 26)
            if j % 2 == 1:
                issue(e, R, j)
        for p in (2, 3):
            ACC = ACCA if p == 2 else ACCB
            if p == 2:
                q = qk_queue(e) + geglu_queue(e, None, 0, True)
                per = 3
            else:
                q = v_queue(e) if vtype else geglu_queue(e, ACCA, 0, False)
                per = 6 if vtype else 4
            for j in range(28):
                step = (P2 if p == 2 else P3) + j
                if step in bars:
                    if step == 48:
                        sync(e, R, step, drain={"stqk"}, publish=[K1])
                    elif step == 72 and vtype:
                        sync(e, R, step, drain={"st0"}, publish=[K2])
                    else:
                        sync(e, R, step)
                    if step == 36:
                        e.salu("s_lshr_b32", A, "s2", 3)
                        e.salu("s_lshl_b32", A, A, 3)
                        e.salu("s_add_u32", A, A, W_)
                        e.salu("s_mul_i32", B, A, 49 * 128)
                        e.salu("s_mul_i32", A, A, 13 * 128)
                        e.valu("v_min_u32", vr(ET + 11), "48", "v0")
                        e.valu("v_lshlrev_b32", vr(ET + 11), "7", vr(ET + 11))
                        e.bload(VJ, 1, ET + 11, S_WD, B)
                        e.valu("v_min_u32", vr(ET + 11), "12", "v0")
                        e.valu("v_lshlrev_b32", vr(ET + 11), "7", vr(ET + 11))
                        e.bload(VJ + 1, 1, ET + 11, S_WO, A)
                    if step == 60:
                        e.valu("v_mov_b32", vr(ET + 11), "0")
                        poll_issue(e, ET + 11, S_DBG, "0")
                    if step == 72:
                        poll_check(e, ET + 11, S_DBG, "0", "0x100")
                        e.salu("s_lshr_b32", A, HEAD, 1)
                        e.salu("s_lshl_b32", A, A, 6)
                        e.salu("s_lshl_b32", B, QB, 2)
                        e.salu("s_add_u32", B, B, A)
                        e.salu("s_add_u32", A, A, 8 * 64)
                        e.salu("s_lshr_b32", D, HEAD, 2)
                        e.salu("s_lshl_b32", D, D, 6)
                        e.salu("s_add_u32", D, D, 1024 - 64)
                        e.valu("v_mov_b32", "v7", D)
                        e.valu("v_mov_b32", "v8", A)
                        e.valu("v_cmp_gt_u32", "vcc", "16", "v0")
                        e.valu("v_cndmask_b32", "v7", "v7", "v8", "vcc")
                        e.valu("v_lshl_add_u32", "v7", "v0", "2", "v7")
                        e.valu("v_mov_b32", "v8", B)
                        e.valu("v_cndmask_b32", "v7", "v7", "v8", HM)
                        e.salu("s_mov_b32", O_H, hex(WS_FL))
                if step == 78:
                    poll_issue(e, 7, S_WS, O_H)
                if p == 2 and j == 27 and vtype:
                    e.salu("s_lshl_b32", A, G_, 6)
                    tr_addr(e, TA0, A, "0")
                for i in range(2):
                    a, b = WF + 8 * (j & 1) + 4 * i, XF + 4 * j
                    if vtype and p == 2:
                        a, b = b, a
                    e.mfma(ACC + 16 * i, a, b, "0" if j == 0 else None)
                    if j + 1 < 28:
                        frag(p, j + 1, i)
                    elif p == 2:
                        frag(3, 0, i)
                    if i == 1:
                        issue(e, R, step)
                    if j >= 1:
                        for _ in range(per):
                            if q:
                                q.pop(0)()
            assert not q

    ev = e.fork()
    Rv = copy.deepcopy(R)
    mid(e, R, False)
    ev.label("L_VTYPE")
    mid(ev, Rv, True)
    assert R.slot == Rv.slot and R.free == Rv.free and R.busy == Rv.busy
    assert e.lines[-12:] == ev.lines[-12:], (e.lines[-12:], ev.lines[-12:])
    assert e.lgkm == ev.lgkm
    nv = len(ev.vm)
    strip = lambda q: [(d, t) for d, t in q]
    common = 0
    while common < min(len(e.vm), nv) and e.vm[-1 - common] == ev.vm[-1 - common]:
        common += 1
    ev.wait(vm=common)
    ev.salu("s_branch", "L_JOIN")
    e.label("L_JOIN")
    e.stamp(30)

    poll_check(e, 7, S_WS, O_H, "1")
    e.stamp(31)
    R.kv_ok = True
    e.salu("s_lshl_b32", A, HEAD, 6)
    e.salu("s_add_u32", A, A, QT)
    e.salu("s_lshl_b32", A, A, 11)
    e.bload(QF, 4, 1, S_WS, A, 0, flags=SC)
    e.bload(QF + 4, 4, 1, S_WS, A, 1024, flags=SC)
    for _ in range(3):
        issue(e, R, TR0)
    q = geglu_queue(e, ACCB, 12, False)
    n = 0
    while q:
        q.pop(0)()
        n += 1
        if n % 24 == 0:
            issue(e, R, TR0)
    KA, WA0, WA1 = 3, 6, 13
    T = T2
    e.salu("s_lshl_b32", A, G_, 12)
    e.valu("v_add_u32", vr(KA), A, "v1")
    e.valu("v_add_u32", vr(KA + 1), "0x10000", vr(KA))
    e.valu("v_add_u32", vr(KA + 2), "0x20000", vr(KA))
    e.valu("v_lshrrev_b32", vr(T), "5", "v0")
    e.valu("v_bfe_u32", "v9", "v0", "2", "2")
    e.valu("v_lshl_add_u32", "v9", vr(T), "2", "v9")
    e.valu("v_lshlrev_b32", "v9", "7", "v9")
    e.salu("s_lshl_b32", A, GQ, 11)
    tr_addr(e, WA0, "0", A)
    tr_addr(e, WA1, "64", A)
    e.salu("s_lshr_b32", A, TB, 1)
    e.salu("s_lshl_b32", A, A, 7)
    e.salu("s_add_u32", A, A, FH - WS_FL)
    e.salu("s_mul_i32", B, GQ, 12)
    e.salu("s_add_u32", B, B, A)
    e.valu("v_min_u32", "v9", "2", "v0")
    e.valu("v_lshl_add_u32", "v9", "v9", "2", B)
    e.salu("s_lshl_b32", B, GQ, 4)
    e.salu("s_add_u32", A, A, B)
    e.salu("s_add_u32", A, A, 48)
    e.valu("v_and_b32", "v2", "3", "v0")
    e.valu("v_lshl_add_u32", "v10", "v2", "2", A)
    e.salu("s_lshl_b32", D, TB, 1)
    e.salu("s_add_u32", D, D, GTT)
    e.salu("s_lshl_b32", A, D, 6)
    e.salu("s_add_u32", A, A, B)
    e.salu("s_add_u32", A, A, FO - WS_FL)
    e.valu("v_lshl_add_u32", "v2", "v2", "2", A)
    e.salu("s_mov_b32", F2, hex(WS_FL))
    e.salu("s_mul_i32", O_H, D, 112)
    e.salu("s_mul_i32", B, GQ, 12)
    e.salu("s_add_u32", O_H, O_H, B)
    e.salu("s_lshl_b32", O_H, O_H, 10)
    e.salu("s_add_u32", O_H, O_H, hex(WS_H))
    e.salu("s_lshl_b32", E, D, 2)
    e.salu("s_add_u32", E, E, GQ)
    e.salu("s_lshl_b32", E, E, 13)
    e.salu("s_add_u32", E, E, hex(WS_O))
    e.stamp(32)
    sync(e, R, TR1, drain={"st0"}, publish=[K2])

    hn = [0]

    def issue_h():
        m = hn[0]
        if m >= 28:
            return
        e.bload(HF + 4 * (m % NH), 4, 1, S_WS, O_H, (m & 3) * 1024, flags=SC)
        if m == 11:
            e.salu("s_lshl_b32", A, GQ, 12)
            e.salu("s_add_u32", O_H, O_H, A)
            e.salu("s_add_u32", O_H, O_H, (4 + 48 - 12) * 1024)
        elif m & 3 == 3:
            e.salu("s_add_u32", O_H, O_H, 4096)
        hn[0] += 1

    def kv_read(t, f):
        byte = R.addr(("kv", t)) + f * 1024
        e.ds_read("ds_read_b128", KV + 16 * (t % 3) + 4 * f, 4, KA + (byte >> 16), byte & 0xffff)

    def w_read(e, m, ct, d):
        tr_frag(e, d, WA1 if ct else WA0, R.addr(("w", m)), second=1024)

    byte = R.addr(("kv", 0))
    e.valu("v_add_u32", vr(T + 4), hex(byte), "v1")
    e.ds_read("ds_read_b128", KV + 32, 4, T + 4, 0)
    e.ds_read("ds_read_b128", KV + 36, 4, T + 4, 1024)
    for t in range(2):
        for f in range(4):
            kv_read(t, f)
    for _ in range(2):
        issue(e, R, TR1)
    S1 = SS + 16
    e.mfma(S1, KV + 32, QF, "0")
    e.mfma(S1, KV + 36, QF + 4)
    for _ in range(2):
        issue(e, R, TR1)
    e.valu("v_max3_f32", vr(T), vr(S1), vr(S1 + 1), vr(S1 + 2))
    e.valu("v_max3_f32", vr(T + 1), vr(S1 + 3), vr(S1 + 4), vr(S1 + 5))
    e.valu("v_max3_f32", vr(T + 2), vr(S1 + 6), vr(S1 + 7), vr(S1 + 8))
    e.valu("v_max3_f32", vr(T + 3), vr(S1 + 9), vr(S1 + 10), vr(S1 + 11))
    e.valu("v_max3_f32", vr(T), vr(T), vr(S1 + 12), vr(S1 + 13))
    e.valu("v_max3_f32", vr(T + 1), vr(T + 1), vr(S1 + 14), vr(S1 + 15))
    e.valu("v_max3_f32", vr(T), vr(T), vr(T + 1), vr(T + 2))
    e.valu("v_max_f32", vr(T), vr(T), vr(T + 3))
    e.valu("v_mov_b32", vr(T + 1), vr(T))
    e.valu("v_permlane32_swap_b32", vr(T), vr(T + 1))
    e.valu("v_max_f32", vr(T), vr(T), vr(T + 1))
    e.valu("v_sub_f32", vr(T), hexf(-OFFS), vr(T))
    e.valu("v_cvt_pk_bf16_f32", vr(T), vr(T), "0")
    e.valu("v_cndmask_b32", vr(QF + 6), vr(QF + 6), vr(T), HM)
    e.mfma(SS, KV, QF, "0")
    e.mfma(SS, KV + 4, QF + 4)
    e.stamp(33)

    HL = 5
    for t in range(32):
        step = AT + t
        if step in bars:
            if t == barsA[0]:
                sync(e, R, step, drain={"st12"}, publish=[K3])
            else:
                sync(e, R, step)
        if prio:
            p0 = max(b for b in list(barsA) + [0] if b <= t)
            p1 = min([b for b in barsA if b > t] + [32])
            e.salu("s_setprio", 3 - (4 * (t - p0)) // (p1 - p0))
        if t == G0 - HL:
            poll_check(e, 9, S_WS, F2, "1")
        if t == G0 - HL + 12:
            poll_check(e, 10, S_WS, F2, "1")
        S = SS + 16 * (t & 1)
        Sn = SS + 16 * ((t + 1) & 1)
        kvc = KV + 16 * (t % 3)
        kvn = KV + 16 * ((t + 1) % 3)
        kvp = KV + 16 * ((t - 1) % 3)
        m = t - G0
        g = m >= 0
        gr = m + 1 >= 0
        mf = []
        if t + 1 < 32:
            mf.append(lambda: e.mfma(Sn, kvn, QF, "0"))
        if t > 0:
            mf.append(lambda: e.mfma(OA, kvp + 12, PP + 4))
        if t + 1 < 32:
            mf.append(lambda: e.mfma(Sn, kvn + 4, QF + 4))
        n1 = len(mf)
        if g:
            mf.append(lambda: e.mfma(GA, WF + 8 * (m & 1), HF + 4 * (m % NH), "0" if m == 0 else None))
        mf.append(lambda: e.mfma(OA, kvc + 8, PP, "0" if t == 0 else None))
        if g:
            mf.append(lambda: e.mfma(GA + 16, WF + 8 * (m & 1) + 4, HF + 4 * (m % NH), "0" if m == 0 else None))
        side = []
        if t + 2 < 32:
            side += [lambda f=f: kv_read(t + 2, f) for f in (0, 1, 2)]
        if gr:
            side += [lambda: w_read(e, m + 1, 0, WF + 8 * ((m + 1) & 1))]
        if t + 2 < 32:
            side += [lambda: kv_read(t + 2, 3)]
        if gr:
            side += [lambda: w_read(e, m + 1, 1, WF + 8 * ((m + 1) & 1) + 4)]
        ld = []
        if t >= G0 - HL:
            ld.append(issue_h)
        ld += [lambda: issue(e, R, step)] * 3
        if t == G0 - HL - 2:
            ld.append(lambda: poll_issue(e, 9, S_WS, F2))
        if t == G0 - HL + 10:
            ld.append(lambda: poll_issue(e, 10, S_WS, F2))
        va = []
        for hh in range(2):
            for i in range(8):
                va.append((8, lambda r=S + 8 * hh + i: e.valu("v_exp_f32", vr(r), vr(r))))
                if i >= 3 and i % 2 == 1:
                    k = (i - 3) // 2
                    va.append((4, lambda k=k, hh=hh: e.valu("v_cvt_pk_bf16_f32", vr(PP + 4 * hh + k), vr(S + 8 * hh + 2 * k), vr(S + 8 * hh + 2 * k + 1))))
            va.append((4, lambda hh=hh: e.valu("v_cvt_pk_bf16_f32", vr(PP + 4 * hh + 3), vr(S + 8 * hh + 6), vr(S + 8 * hh + 7))))
        groups = [(mf[:n1], va[:12]), (mf[n1:], va[12:])]
        nm = len(mf)
        mi = 0
        for ms, vs in groups:
            tot = sum(c for c, _ in vs)
            acc = 0
            k = 0
            for j, mm in enumerate(ms):
                mm()
                mi += 1
                for _ in range(-(-len(side) // (nm - mi + 1))):
                    side.pop(0)()
                for _ in range(-(-len(ld) // (nm - mi + 1))):
                    ld.pop(0)()
                while k < len(vs) and (acc + vs[k][0] / 2 <= tot * (j + 1) / len(ms) or j == len(ms) - 1):
                    vs[k][1]()
                    acc += vs[k][0]
                    k += 1
        assert not side and not ld
    assert hn[0] == 28, hn
    e.mfma(OA, KV + 16 * (31 % 3) + 12, PP + 4)
    e.stamp(34)
    if prio:
        e.salu("s_setprio", 0)
    assert len(R.free) >= 2, R.free
    sa, sb = R.free[0] * 8192, R.free[1] * 8192
    e.salu("s_mov_b32", A, sa)
    e.salu("s_cmp_ge_u32", TT, 2)
    e.salu("s_cselect_b32", A, sb, A)
    e.salu("s_and_b32", B, TT, 1)
    e.salu("s_lshl_b32", B, B, 12)
    e.salu("s_add_u32", A, A, B)
    e.valu("v_add_u32", vr(KA), A, "v1")
    e.wait_tags(R.needed(999))
    e.salu("s_cmp_eq_u32", G_, 0)
    e.salu("s_cbranch_scc1", "L_KH0")
    f = e.fork()
    for i in range(4):
        e.ds_write("ds_write_b128", KA, OA + 4 * i, 4, 1024 * i)
    e.wait(lgkm=0)
    e.barrier()
    e.label("L_TAIL")
    f.label("L_KH0")
    f.wait(lgkm=0)
    f.barrier()
    for i in range(4):
        f.ds_read("ds_read_b128", SS + 4 * i, 4, KA, 1024 * i)
    f.salu("s_lshl_b32", A, QT, 5)
    f.salu("s_lshl_b32", B, HEAD, 1)
    f.salu("s_add_u32", A, A, B)
    f.salu("s_lshl_b32", D, A, 1)
    f.salu("s_add_u32", D, D, hex(FO))
    f.salu("s_lshl_b32", A, A, 10)
    f.salu("s_add_u32", A, A, hex(WS_O))
    f.salu("s_mov_b32", B, hexf(2.0 ** 120))
    for i in (12, 13, 14, 15) + tuple(range(12)):
        f.valu("v_add_f32", vr(OA + i), vr(OA + i), vr(SS + i))
    f.valu("v_mov_b32", vr(T), vr(OA + 12))
    f.valu("v_mov_b32", vr(T + 1), vr(OA + 12))
    f.valu("v_mul_f32", vr(T + 2), "0", vr(OA))
    f.valu("v_permlane32_swap_b32", vr(T), vr(T + 1))
    for i in range(1, 16):
        f.valu("v_fmac_f32", vr(T + 2), "0", vr(OA + i))
    f.valu("v_add_f32", vr(T + 2), vr(T + 2), vr(T + 1))
    f.valu("v_cmp_nle_f32", "vcc", hexf(2.0 ** -100), vr(T + 2))
    f.valu("v_cmp_nge_f32", M2, B, vr(T + 2))
    f.salu("s_or_b64", "vcc", "vcc", M2)
    f.nop(2)
    f.salu("s_cbranch_vccnz", "L_SLOW")
    f.label("L_FIN")
    f.valu("v_rcp_f32", vr(T + 1), vr(T + 1))
    f.valu("v_cmp_eq_u32", "vcc", "0", "v0")
    f.valu("v_cndmask_b32", vr(T), vr(T + 1), "0", HM)
    for i in range(16):
        f.valu("v_mul_f32", vr(OA + i), vr(OA + i), vr(T if i == 12 else T + 1))
        if i % 2 == 1:
            f.valu("v_cvt_pk_bf16_f32", vr(PP + i // 2), vr(OA + i - 1), vr(OA + i))
        if i == 7:
            f.bstore(PP, 4, 1, S_WS, A, 0, flags=SC)
    f.bstore(PP + 4, 4, 1, S_WS, A, 1024, flags=SC)
    f.valu("v_mov_b32", vr(T + 2), "0x7ffffff0")
    f.valu("v_cndmask_b32", vr(T + 2), vr(T + 2), "0", "vcc")
    f.valu("v_mov_b32", vr(T + 3), "1")
    f.wait_force("vmcnt(0)")
    f.stamp(35)
    f.bstore(T + 3, 1, T + 2, S_WS, D, 0, flags=SC)
    f.salu("s_branch", "L_TAIL")
    for m in range(32 - G0, 28):
        e.mfma(GA, WF + 8 * (m & 1), HF + 4 * (m % NH))
        if m + 1 < 28:
            w_read(e, m + 1, 0, WF + 8 * ((m + 1) & 1))
        e.mfma(GA + 16, WF + 8 * (m & 1) + 4, HF + 4 * (m % NH))
        if m + 1 < 28:
            w_read(e, m + 1, 1, WF + 8 * ((m + 1) & 1) + 4)
    poll_issue(e, 2, S_WS, F2)
    WOF = 64
    for n in range(8):
        for ct in range(2):
            w_read(e, 28 + n, ct, WOF + 8 * n + 4 * ct)
    e.valu("v_lshrrev_b32", vr(T), "3", "v0")
    e.salu("s_lshl_b32", A, W_, 3)
    e.valu("v_add_u32", vr(T), A, vr(T))
    e.valu("v_and_b32", vr(T + 1), "7", "v0")
    e.valu("v_mul_u32_u24", vr(T + 2), "896", vr(T))
    e.valu("v_lshl_add_u32", vr(T + 2), vr(T + 1), "4", vr(T + 2))
    e.salu("s_mul_i32", D, TB, 64 * 896)
    e.salu("s_lshl_b32", A, CB, 7)
    e.salu("s_add_u32", D, D, A)
    XRr = 24
    e.bload(XRr, 4, T + 2, S_X, D)
    e.valu("v_mul_u32_u24", vr(T + 3), "272", vr(T))
    e.valu("v_lshl_add_u32", vr(T + 3), vr(T + 1), "5", vr(T + 3))
    e.valu("v_and_b32", vr(T + 4), "31", "v0")
    e.valu("v_mul_u32_u24", vr(T + 4), "272", vr(T + 4))
    e.valu("v_lshrrev_b32", vr(T + 5), "5", "v0")
    e.valu("v_lshl_add_u32", vr(T + 4), vr(T + 5), "4", vr(T + 4))
    e.salu("s_mul_i32", A, W_, 32 * 272)
    e.valu("v_add_u32", vr(T + 4), A, vr(T + 4))
    e.wait(lgkm=0)
    e.barrier()
    e.stamp(36)
    poll_check(e, 2, S_WS, F2, "1")
    e.stamp(37)
    for n in range(8):
        e.bload(HF + 4 * n, 4, 1, S_WS, E, (n & 3) * 1024, flags=SC)
        if n == 3:
            e.salu("s_add_u32", E, E, 4096)
    for n in range(8):
        e.mfma(GA, WOF + 8 * n, HF + 4 * n)
        e.mfma(GA + 16, WOF + 8 * n + 4, HF + 4 * n)
    e.stamp(38)
    for ct in range(2):
        for i in range(4):
            e.ds_write("ds_write_b128", T + 4, GA + 16 * ct + 4 * i, 4, 128 * ct + 32 * i)
    RD = 32
    for i in range(4):
        e.valu("v_lshlrev_b32", vr(RD + 32 + 2 * i), "16", vr(XRr + i))
        e.valu("v_and_b32", vr(RD + 32 + 2 * i + 1), "0xffff0000", vr(XRr + i))
    e.wait(lgkm=0)
    e.barrier()
    for q_ in range(4):
        e.ds_read("ds_read_b128", RD + 8 * q_, 4, T + 3, q_ * 64 * 272)
        e.ds_read("ds_read_b128", RD + 8 * q_ + 4, 4, T + 3, q_ * 64 * 272 + 16)
    for q_ in range(4):
        for i in range(8):
            e.valu("v_add_f32", vr(RD + 32 + i), vr(RD + 32 + i), vr(RD + 8 * q_ + i))
    for i in range(4):
        e.valu("v_cvt_pk_bf16_f32", vr(XRr + i), vr(RD + 32 + 2 * i), vr(RD + 32 + 2 * i + 1))
    e.bstore(XRr, 4, T + 2, S_OUT, D)
    e.stamp(39)
    if Emit.STAMPS:
        e.wait(vm=0)
    e.stamp(40)
    e.stamp(41, real=True)
    e.stamp_dump(S_WS, WS_ST, int(W_[1:]), 8, T, 0)
    e.label("L_END")
    e.salu("s_endpgm")

    s = Emit()
    s.label("L_SLOW")
    s.wait_force("vmcnt(0) lgkmcnt(0)")
    s.valu("v_cndmask_b32", vr(QF + 6), vr(QF + 6), "0", HM)
    s.valu("v_mov_b32", vr(T), "0xff800000")
    s.salu("s_mov_b32", O_KV, KVB)
    s.salu("s_mov_b32", B, 64)
    s.label("L_SLOW1")
    s.bload(KV, 4, 1, S_WS, O_KV, 0, flags=SC)
    s.bload(KV + 4, 4, 1, S_WS, O_KV, 1024, flags=SC)
    s.mfma(SS, KV, QF, "0")
    s.mfma(SS, KV + 4, QF + 4)
    for i in range(8):
        s.valu("v_max3_f32", vr(T), vr(T), vr(SS + 2 * i), vr(SS + 2 * i + 1))
    s.salu("s_add_u32", O_KV, O_KV, 4096)
    s.salu("s_sub_u32", B, B, 1)
    s.salu("s_cmp_lg_u32", B, 0)
    s.salu("s_cbranch_scc1", "L_SLOW1")
    s.valu("v_mov_b32", vr(T + 1), vr(T))
    s.valu("v_permlane32_swap_b32", vr(T), vr(T + 1))
    s.valu("v_max_f32", vr(T), vr(T), vr(T + 1))
    for i in range(16):
        s.valu("v_mov_b32", vr(OA + i), "0")
    s.salu("s_mov_b32", O_KV, KVB)
    s.salu("s_mov_b32", B, 64)
    s.label("L_SLOW2")
    for i in range(4):
        s.bload(KV + 4 * i, 4, 1, S_WS, O_KV, 1024 * i, flags=SC)
    s.mfma(SS, KV, QF, "0")
    s.mfma(SS, KV + 4, QF + 4)
    for i in range(16):
        s.valu("v_sub_f32", vr(SS + i), vr(SS + i), vr(T))
    for i in range(16):
        s.valu("v_exp_f32", vr(SS + i), vr(SS + i))
    for i in range(8):
        s.valu("v_cvt_pk_bf16_f32", vr(PP + i), vr(SS + 2 * i), vr(SS + 2 * i + 1))
    s.mfma(OA, KV + 8, PP)
    s.mfma(OA, KV + 12, PP + 4)
    s.salu("s_add_u32", O_KV, O_KV, 4096)
    s.salu("s_sub_u32", B, B, 1)
    s.salu("s_cmp_lg_u32", B, 0)
    s.salu("s_cbranch_scc1", "L_SLOW2")
    s.nop(16)
    s.valu("v_mov_b32", vr(T), vr(OA + 12))
    s.valu("v_mov_b32", vr(T + 1), vr(OA + 12))
    s.valu("v_permlane32_swap_b32", vr(T), vr(T + 1))
    s.salu("s_branch", "L_FIN")
    return e.text() + ev.text() + f.text() + s.text()


NAME = "parallel_sum__mha_block__geglu_ffn__prompt_kernel"
HEADER = open('parallel_sum__mha_block__geglu_ffn__prompt.s.ref').read().split("; Override")[0]


def build(**kw):
    out = HEADER + "; @launch grid=(256,1,1) block=(512,1,1) lds=163840\n"
    out += '.amdgcn_target "amdgcn-amd-amdhsa--gfx950"\n.text\n' + gen(NAME, **kw)
    out += f""".section .rodata,"a"
.p2align 6
.amdhsa_kernel {NAME}
  .amdhsa_next_free_vgpr 256
  .amdhsa_next_free_sgpr 100
  .amdhsa_accum_offset 256
  .amdhsa_group_segment_fixed_size 0
  .amdhsa_kernarg_size 80
  .amdhsa_user_sgpr_count 2
  .amdhsa_user_sgpr_kernarg_segment_ptr 1
  .amdhsa_system_sgpr_workgroup_id_x 1
.end_amdhsa_kernel
"""
    return out


if __name__ == "__main__":
    Emit.STAMPS = len(sys.argv) > 2 and sys.argv[2] == "stamps"
    path = sys.argv[1] if len(sys.argv) > 1 else 'parallel_sum__mha_block__geglu_ffn__prompt.s'
    open(path, "w").write(build())
```
